```python
import torch

def _softmax(x, axis=-1):
    return torch.softmax(x, dim=axis)

def _gelu(x):
    return torch.nn.functional.gelu(x, approximate='tanh')

def _silu(x):
    return torch.nn.functional.silu(x)

def _sigmoid(x):
    return torch.sigmoid(x)

def _layernorm(x, axis=-1, eps=1e-05):
    m = x.mean(dim=axis, keepdim=True)
    v = x.var(dim=axis, keepdim=True, unbiased=False)
    return (x - m) / torch.sqrt(v + eps)

def _scatter_add(tgt, idx, src, axis=0):
    return tgt.clone().index_add_(axis, idx, src)

def _segment_sum(src, seg, n):
    out = torch.zeros((n,) + src.shape[1:], dtype=src.dtype)
    return out.index_add_(0, seg, src)

def _pad(x, pw):
    flat = tuple((v for pair in reversed(pw) for v in pair))
    return torch.nn.functional.pad(x, flat)
kernel_name = 'adaLN_cond__gqa_block_cached__glu_gated_geglu__prompt'

def setup_inputs():

    _w = lambda a: (lambda t: t.to(torch.bfloat16) if t.is_floating_point() else t)(torch.as_tensor(a))

    def _A_setup():
        B, Sq, D = (1, 2048, 512)
        Hq, Hkv, Sk, Dh = (32, 8, 2048, 128)
        assert Hq % Hkv == 0, (Hq, Hkv)
        return {'x': _w((lambda *s: torch.randn(*s, dtype=torch.bfloat16) * 0.05)(B, Sq, D)), 'k_cache': _w((lambda *s: torch.randn(*s, dtype=torch.bfloat16) * 0.8)(B, Hkv, Sk, Dh)), 'v_cache': _w((lambda *s: torch.randn(*s, dtype=torch.bfloat16) * 3.2)(B, Hkv, Sk, Dh)), 'wq': _w((lambda *s: torch.randn(*s, dtype=torch.bfloat16) * 0.8)(D, Hq * Dh) * D ** (-0.5)), 'wo': _w((lambda *s: torch.randn(*s, dtype=torch.bfloat16) * 3.2)(Hq * Dh, D) * (Hq * Dh) ** (-0.5))}
    _A_in = _A_setup()

    def _B_setup():
        B, S, Dm, Df = (1, 2048, 512, 1792)
        return {'x': _w((lambda *s: torch.randn(*s, dtype=torch.bfloat16) * 0.05)(B, S, Dm)), 'w_gate': _w((lambda *s: torch.randn(*s, dtype=torch.bfloat16) * 3.2)(Dm, Df) * Dm ** (-0.5)), 'w_up': _w((lambda *s: torch.randn(*s, dtype=torch.bfloat16) * 3.2)(Dm, Df) * Dm ** (-0.5)), 'w_down': _w((lambda *s: torch.randn(*s, dtype=torch.bfloat16) * 3.2)(Df, Dm) * Df ** (-0.5))}
    _B_in = _B_setup()
    return {'A_x': _A_in['x'], 'A_k_cache': _A_in['k_cache'], 'A_v_cache': _A_in['v_cache'], 'A_wq': _A_in['wq'], 'A_wo': _A_in['wo'], 'B_x': _B_in['x'], 'B_w_gate': _B_in['w_gate'], 'B_w_up': _B_in['w_up'], 'B_w_down': _B_in['w_down'], 'c': _w((lambda *s: torch.randn(*s, dtype=torch.bfloat16) * 0.4)(1, 512) * 8.0), 'w_mod': _w((lambda *s: torch.randn(*s, dtype=torch.bfloat16) * 0.4)(512, 6 * 512) * 512 ** (-0.5) * 8.0)}

def reference(A_x, A_k_cache, A_v_cache, A_wq, A_wo, B_x, B_w_gate, B_w_up, B_w_down, c, w_mod):

    def _A_ref(x, k_cache, v_cache, wq, wo):
        B, Sq, D = x.shape
        Hq, Dh = (32, 128)
        Hkv = k_cache.shape[1]
        rep = Hq // Hkv
        q = (lambda x, *d: x.permute(*d))((x @ wq).reshape(B, Sq, Hq, Dh), 0, 2, 1, 3)
        k = (lambda x, n, axis: torch.repeat_interleave(x, n, dim=axis))(k_cache, rep, axis=1)
        v = (lambda x, n, axis: torch.repeat_interleave(x, n, dim=axis))(v_cache, rep, axis=1)
        scores = torch.einsum('bhqd,bhkd->bhqk', q, k) * Dh ** (-0.5)
        p = _softmax(scores, axis=-1)
        o = torch.einsum('bhqk,bhkd->bhqd', p, v)
        return (lambda x, *d: x.permute(*d))(o, 0, 2, 1, 3).reshape(B, Sq, Hq * Dh) @ wo

    def _B_ref(x, w_gate, w_up, w_down):
        g = torch.einsum('bsd,df->bsf', x, w_gate)
        u = torch.einsum('bsd,df->bsf', x, w_up)
        h = _gelu(g) * u
        return torch.einsum('bsf,fd->bsd', h, w_down)
    x = A_x
    mod = (_silu(c) @ w_mod).reshape(c.shape[0], 6, 1, -1)
    sa, ca, ga, sb, cb, gb = (mod[:, 0].clone(), mod[:, 1].clone(), mod[:, 2].clone(), mod[:, 3].clone(), mod[:, 4].clone(), mod[:, 5].clone())
    h = _layernorm(x, axis=-1) * (1 + ca) + sa
    x = x + ga * _A_ref(h, A_k_cache, A_v_cache, A_wq, A_wo)
    h = _layernorm(x, axis=-1) * (1 + cb) + sb
    x = x + gb * _B_ref(h, B_w_gate, B_w_up, B_w_down)
    return x
```

```python
import sys

OUT = "adaLN_cond__gqa_block_cached__glu_gated_geglu__prompt.s"

MOD = 0x0
KP = 0x00100000
VP = 0x00500000
WQP = 0x00900000
WOP = 0x00D00000
WGP = 0x01100000
WUP = 0x01300000
WDP = 0x01500000
H1 = 0x01700000
QF = 0x01900000
OF = 0x02900000
PART = 0x03900000
X2 = 0x04900000
H2 = 0x04D00000
HM = 0x04F00000
PART2 = 0x05700000
WS_SIZE = 268435456

A_X, A_K, A_V, A_WQ, A_WO, A_BX, A_WG, A_WU, A_WD, A_C, A_WMOD, A_OUT, A_DBG, A_WS = [8 * i for i in range(14)]

lines = []
launches = []


def e(s):
    lines.append("    " + s)


def lab(s):
    lines.append(s + ":")


def srd(dst, base, size):
    e(f"s_mov_b32 s{dst}, s{base}")
    e(f"s_and_b32 s{dst+1}, s{base+1}, 0xffff")
    e(f"s_mov_b32 s{dst+2}, {size}")
    e(f"s_mov_b32 s{dst+3}, 0x00020000")


def srd_ws(dst, wsreg, off, size):
    e(f"s_add_u32 s{dst}, s{wsreg}, {off}")
    e(f"s_addc_u32 s{dst+1}, s{wsreg+1}, 0")
    e(f"s_and_b32 s{dst+1}, s{dst+1}, 0xffff")
    e(f"s_mov_b32 s{dst+2}, {size}")
    e(f"s_mov_b32 s{dst+3}, 0x00020000")


def kernel_begin(name):
    lines.append(f".globl {name}")
    lines.append(".p2align 8")
    lines.append(f".type {name},@function")
    lab(name)


descs = []


def kernel_end(name, vgprs, sgprs=96, agprs=0):
    e("s_endpgm")
    acc = (vgprs + 3) // 4 * 4
    nfv = acc + agprs if agprs else vgprs
    descs.append(f""".amdhsa_kernel {name}
  .amdhsa_next_free_vgpr {nfv}
  .amdhsa_next_free_sgpr {sgprs}
  .amdhsa_accum_offset {acc}
  .amdhsa_group_segment_fixed_size 0
  .amdhsa_kernarg_size 112
  .amdhsa_user_sgpr_count 2
  .amdhsa_user_sgpr_kernarg_segment_ptr 1
  .amdhsa_system_sgpr_workgroup_id_x 1
.end_amdhsa_kernel""")


def launch(name, grid, block, lds=0):
    launches.append(f"; @launch kernel={name} grid=({grid},1,1) block=({block},1,1) lds={lds}")


def k_mod():
    name = "k_mod_kernel"
    kernel_begin(name)
    e("s_cmp_ge_u32 s2, 24")
    e("s_cbranch_scc1 L_mod_done")
    e(f"s_load_dwordx2 s[4:5], s[0:1], {A_C}")
    e(f"s_load_dwordx2 s[6:7], s[0:1], {A_WMOD}")
    e(f"s_load_dwordx2 s[8:9], s[0:1], {A_WS}")
    e("s_waitcnt lgkmcnt(0)")
    srd(12, 4, 1024)
    srd(16, 6, 512 * 3072 * 2)
    srd_ws(20, 8, MOD, 3072 * 4)
    e("v_lshlrev_b32 v1, 2, v0")
    e("buffer_load_dword v2, v1, s[12:15], 0 offen")
    e("s_waitcnt vmcnt(0)")
    e("v_lshlrev_b32 v3, 16, v2")
    e("v_and_b32 v4, 0xffff0000, v2")
    for r in (3, 4):
        e(f"v_mul_f32 v5, 0xbfb8aa3b, v{r}")
        e("v_exp_f32 v5, v5")
        e("s_nop 0")
        e("v_add_f32 v5, 1.0, v5")
        e("v_rcp_f32 v5, v5")
        e("s_nop 0")
        e(f"v_mul_f32 v{r}, v{r}, v5")
    e("v_cvt_pk_bf16_f32 v5, v3, v4")
    e("v_lshlrev_b32 v14, 16, v5")
    e("v_and_b32 v15, 0xffff0000, v5")
    e("v_lshlrev_b32 v6, 3, v0")
    e("ds_write_b64 v6, v[14:15]")
    e("s_waitcnt lgkmcnt(0)")
    e("s_barrier")
    e("v_lshrrev_b32 v7, 6, v0")
    e("v_and_b32 v8, 63, v0")
    e("v_lshlrev_b32 v9, 9, v7")
    e("s_lshl_b32 s3, s2, 8")
    e("v_lshlrev_b32 v10, 2, v8")
    e("v_add_u32 v10, s3, v10")
    e("v_mov_b32 v11, 6144")
    e("v_lshlrev_b32 v12, 7, v7")
    e("v_mul_lo_u32 v12, v12, v11")
    e("v_add_u32 v10, v10, v12")
    e("v_mov_b32 v20, 0")
    e("v_mov_b32 v21, 0")
    e("s_mov_b32 s3, 0")
    lab("L_mod_loop")
    for u in range(8):
        e(f"buffer_load_dword v{24+u}, v10, s[16:19], 0 offen offset:0")
        e("v_add_u32 v10, 6144, v10")
    e("ds_read_b128 v[32:35], v9")
    e("ds_read_b128 v[36:39], v9 offset:16")
    e("v_add_u32 v9, 32, v9")
    e("s_waitcnt vmcnt(0) lgkmcnt(0)")
    for u in range(8):
        e(f"v_lshlrev_b32 v40, 16, v{24+u}")
        e(f"v_and_b32 v41, 0xffff0000, v{24+u}")
        e(f"v_fmac_f32 v20, v40, v{32+u}")
        e(f"v_fmac_f32 v21, v41, v{32+u}")
    e("s_add_u32 s3, s3, 1")
    e("s_cmp_lt_u32 s3, 16")
    e("s_cbranch_scc1 L_mod_loop")
    e("s_barrier")
    e("v_lshlrev_b32 v9, 3, v0")
    e("v_add_u32 v9, 2048, v9")
    e("ds_write_b64 v9, v[20:21]")
    e("s_waitcnt lgkmcnt(0)")
    e("s_barrier")
    e("v_lshlrev_b32 v9, 3, v8")
    e("v_add_u32 v9, 2048, v9")
    e("ds_read_b64 v[24:25], v9")
    e("ds_read_b64 v[26:27], v9 offset:512")
    e("ds_read_b64 v[28:29], v9 offset:1024")
    e("ds_read_b64 v[30:31], v9 offset:1536")
    e("s_waitcnt lgkmcnt(0)")
    e("v_add_f32 v24, v24, v26")
    e("v_add_f32 v25, v25, v27")
    e("v_add_f32 v28, v28, v30")
    e("v_add_f32 v29, v29, v31")
    e("v_add_f32 v24, v24, v28")
    e("v_add_f32 v25, v25, v29")
    e("v_cvt_pk_bf16_f32 v26, v24, v25")
    e("v_lshlrev_b32 v24, 16, v26")
    e("v_and_b32 v25, 0xffff0000, v26")
    e("s_lshl_b32 s3, s2, 9")
    e("v_lshlrev_b32 v9, 3, v8")
    e("v_add_u32 v9, s3, v9")
    e("v_cmp_gt_u32 vcc, 64, v0")
    e("s_and_saveexec_b64 s[24:25], vcc")
    e("buffer_store_dwordx2 v[24:25], v9, s[20:23], 0 offen")
    e("s_waitcnt vmcnt(0)")
    lab("L_mod_done")
    kernel_end(name, 48)
    launch(name, 24, 256, 4096)


def k_prep_w(name, argoff, K, N, dst):
    KS = K // 16
    nfr = (N // 32) * KS
    kernel_begin(name)
    e(f"s_cmp_ge_u32 s2, {nfr // 4}")
    e(f"s_cbranch_scc1 L_{name}_done")
    e(f"s_load_dwordx2 s[4:5], s[0:1], {argoff}")
    e(f"s_load_dwordx2 s[8:9], s[0:1], {A_WS}")
    e("s_waitcnt lgkmcnt(0)")
    srd(12, 4, K * N * 2)
    srd_ws(16, 8, dst, K * N * 2)
    e("v_lshrrev_b32 v1, 6, v0")
    e("s_lshl_b32 s3, s2, 2")
    e("v_add_u32 v1, s3, v1")
    e("v_and_b32 v2, 63, v0")
    magic = (2**32 + KS - 1) // KS
    e(f"s_mov_b32 s20, {magic}")
    e("v_mul_hi_u32 v3, v1, s20")
    e(f"s_mov_b32 s21, {KS}")
    e("v_mul_lo_u32 v4, v3, s21")
    e("v_sub_u32 v4, v1, v4")
    e("v_lshrrev_b32 v5, 5, v2")
    e("v_lshlrev_b32 v5, 3, v5")
    e("v_lshl_add_u32 v5, v4, 4, v5")
    e(f"s_mov_b32 s21, {N * 2}")
    e("v_mul_lo_u32 v5, v5, s21")
    e("v_and_b32 v6, 31, v2")
    e("v_lshl_add_u32 v6, v3, 5, v6")
    e("v_lshl_add_u32 v5, v6, 1, v5")
    for i in range(8):
        e(f"buffer_load_ushort v{16 + i}, v5, s[12:15], 0 offen")
        e("v_add_u32 v5, s21, v5")
    e("v_lshlrev_b32 v7, 10, v1")
    e("v_lshl_add_u32 v7, v2, 4, v7")
    e("s_waitcnt vmcnt(0)")
    for i in range(4):
        e(f"v_lshl_or_b32 v{8+i}, v{17+2*i}, 16, v{16+2*i}")
    e("buffer_store_dwordx4 v[8:11], v7, s[16:19], 0 offen")
    e("s_waitcnt vmcnt(0)")
    lab(f"L_{name}_done")
    kernel_end(name, 24)
    launch(name, nfr // 4, 256)


def k_prep_k():
    name = "k_prepk_kernel"
    kernel_begin(name)
    e("s_cmp_ge_u32 s2, 1024")
    e(f"s_cbranch_scc1 L_{name}_done")
    e(f"s_load_dwordx2 s[4:5], s[0:1], {A_K}")
    e(f"s_load_dwordx2 s[8:9], s[0:1], {A_WS}")
    e("s_waitcnt lgkmcnt(0)")
    srd(12, 4, 4194304)
    srd_ws(16, 8, KP, 4194304)
    e("v_lshrrev_b32 v1, 6, v0")
    e("s_lshl_b32 s3, s2, 2")
    e("v_add_u32 v1, s3, v1")
    e("v_and_b32 v2, 63, v0")
    e("v_lshrrev_b32 v3, 3, v1")
    e("v_and_b32 v4, 7, v1")
    e("v_and_b32 v5, 31, v2")
    e("v_lshl_add_u32 v5, v3, 5, v5")
    e("v_lshlrev_b32 v5, 8, v5")
    e("v_lshl_add_u32 v5, v4, 5, v5")
    e("v_lshrrev_b32 v6, 5, v2")
    e("v_lshl_add_u32 v5, v6, 4, v5")
    e("buffer_load_dwordx4 v[8:11], v5, s[12:15], 0 offen")
    e("v_lshlrev_b32 v7, 10, v1")
    e("v_lshl_add_u32 v7, v2, 4, v7")
    e("s_waitcnt vmcnt(0)")
    e("buffer_store_dwordx4 v[8:11], v7, s[16:19], 0 offen")
    e("s_waitcnt vmcnt(0)")
    lab(f"L_{name}_done")
    kernel_end(name, 24)
    launch(name, 1024, 256)


def k_prep_v():
    name = "k_prepv_kernel"
    kernel_begin(name)
    e("s_cmp_ge_u32 s2, 1024")
    e(f"s_cbranch_scc1 L_{name}_done")
    e(f"s_load_dwordx2 s[4:5], s[0:1], {A_V}")
    e(f"s_load_dwordx2 s[8:9], s[0:1], {A_WS}")
    e("s_waitcnt lgkmcnt(0)")
    srd(12, 4, 4194304)
    srd_ws(16, 8, VP, 4194304)
    e("v_lshrrev_b32 v1, 6, v0")
    e("s_lshl_b32 s3, s2, 2")
    e("v_add_u32 v1, s3, v1")
    e("v_and_b32 v2, 63, v0")
    e("v_lshrrev_b32 v3, 2, v1")
    e("v_and_b32 v4, 3, v1")
    e("v_lshrrev_b32 v6, 5, v2")
    e("v_lshlrev_b32 v6, 2, v6")
    e("v_lshl_add_u32 v5, v3, 4, v6")
    e("v_lshlrev_b32 v5, 8, v5")
    e("v_and_b32 v6, 31, v2")
    e("v_lshl_add_u32 v6, v4, 5, v6")
    e("v_lshl_add_u32 v5, v6, 1, v5")
    for i in range(8):
        off = (8 * (i >> 2) + (i & 3)) * 256
        e(f"buffer_load_ushort v{16 + i}, v5, s[12:15], 0 offen offset:{off}")
    e("v_lshlrev_b32 v7, 10, v1")
    e("v_lshl_add_u32 v7, v2, 4, v7")
    e("s_waitcnt vmcnt(0)")
    for i in range(4):
        e(f"v_lshl_or_b32 v{8+i}, v{17+2*i}, 16, v{16+2*i}")
    e("buffer_store_dwordx4 v[8:11], v7, s[16:19], 0 offen")
    e("s_waitcnt vmcnt(0)")
    lab(f"L_{name}_done")
    kernel_end(name, 24)
    launch(name, 1024, 256)


def k_ln(name, mode):
    kernel_begin(name)
    e("s_cmp_ge_u32 s2, 512")
    e(f"s_cbranch_scc1 L_{name}_done")
    e(f"s_load_dwordx2 s[4:5], s[0:1], {A_X}")
    e(f"s_load_dwordx2 s[8:9], s[0:1], {A_WS}")
    e("s_waitcnt lgkmcnt(0)")
    srd(12, 4, 2048 * 512 * 2)
    srd_ws(16, 8, MOD, 3072 * 4)
    srd_ws(20, 8, H1 if mode == 1 else H2, 2048 * 512 * 2)
    if mode == 2:
        srd_ws(24, 8, PART, 4 * 2048 * 512 * 4)
        srd_ws(28, 8, X2, 2048 * 512 * 4)
    e("v_lshrrev_b32 v1, 6, v0")
    e("s_lshl_b32 s3, s2, 2")
    e("v_add_u32 v1, s3, v1")
    e("v_and_b32 v2, 63, v0")
    e("v_lshlrev_b32 v3, 10, v1")
    e("v_lshl_add_u32 v3, v2, 4, v3")
    e("buffer_load_dwordx4 v[8:11], v3, s[12:15], 0 offen")
    e("v_lshlrev_b32 v4, 5, v2")
    sh, sc, ga = (0, 512, 1024) if mode == 1 else (3 * 512, 4 * 512, 2 * 512)
    e(f"v_add_u32 v5, {sh*4}, v4")
    e("buffer_load_dwordx4 v[12:15], v5, s[16:19], 0 offen")
    e("buffer_load_dwordx4 v[16:19], v5, s[16:19], 0 offen offset:16")
    e(f"v_add_u32 v5, {sc*4}, v4")
    e("buffer_load_dwordx4 v[20:23], v5, s[16:19], 0 offen")
    e("buffer_load_dwordx4 v[24:27], v5, s[16:19], 0 offen offset:16")
    if mode == 2:
        e(f"v_add_u32 v5, {ga*4}, v4")
        e("buffer_load_dwordx4 v[28:31], v5, s[16:19], 0 offen")
        e("buffer_load_dwordx4 v[32:35], v5, s[16:19], 0 offen offset:16")
        e("v_lshlrev_b32 v6, 11, v1")
        e("v_add_u32 v6, v6, v4")
        for p in range(4):
            e(f"s_mov_b32 s33, {p * 2048 * 512 * 4}")
            e(f"buffer_load_dwordx4 v[{48+8*p}:{51+8*p}], v6, s[24:27], s33 offen")
            e(f"buffer_load_dwordx4 v[{52+8*p}:{55+8*p}], v6, s[24:27], s33 offen offset:16")
    e("s_waitcnt vmcnt(0)")
    for i in range(4):
        e(f"v_lshlrev_b32 v{40+2*i}, 16, v{8+i}")
        e(f"v_and_b32 v{41+2*i}, 0xffff0000, v{8+i}")
    if mode == 2:
        for i in range(8):
            e(f"v_add_f32 v{48+i}, v{48+i}, v{56+i}")
            e(f"v_add_f32 v{64+i}, v{64+i}, v{72+i}")
            e(f"v_add_f32 v{48+i}, v{48+i}, v{64+i}")
            e(f"v_fmac_f32 v{40+i}, v{48+i}, v{28+i}")
        for i in range(4):
            e(f"v_cvt_pk_bf16_f32 v36, v{40+2*i}, v{41+2*i}")
            e(f"v_lshlrev_b32 v{40+2*i}, 16, v36")
            e(f"v_and_b32 v{41+2*i}, 0xffff0000, v36")
        e("buffer_store_dwordx4 v[40:43], v6, s[28:31], 0 offen")
        e("buffer_store_dwordx4 v[44:47], v6, s[28:31], 0 offen offset:16")

    def wave_sum(reg):
        for off in (0x041F, 0x081F, 0x101F, 0x201F, 0x401F):
            e(f"ds_swizzle_b32 v37, v{reg} offset:{off}")
            e("s_waitcnt lgkmcnt(0)")
            e(f"v_add_f32 v{reg}, v{reg}, v37")
        e(f"v_mov_b32 v37, v{reg}")
        e("s_nop 1")
        e(f"v_permlane32_swap_b32 v{reg}, v37")
        e(f"v_add_f32 v{reg}, v{reg}, v37")

    e("v_add_f32 v36, v40, v41")
    for i in range(2, 8):
        e(f"v_add_f32 v36, v36, v{40+i}")
    wave_sum(36)
    e("v_mul_f32 v36, 0x3b000000, v36")
    for i in range(8):
        e(f"v_sub_f32 v{40+i}, v{40+i}, v36")
    e("v_mul_f32 v38, v40, v40")
    for i in range(1, 8):
        e(f"v_fmac_f32 v38, v{40+i}, v{40+i}")
    wave_sum(38)
    e("v_mov_b32 v39, 0x3727c5ac")
    e("v_fmac_f32 v39, 0x3b000000, v38")
    e("v_rsq_f32 v39, v39")
    e("s_nop 0")
    for i in range(8):
        e(f"v_mul_f32 v{40+i}, v{40+i}, v39")
        e(f"v_add_f32 v{20+i}, 1.0, v{20+i}")
        e(f"v_fma_f32 v{40+i}, v{40+i}, v{20+i}, v{12+i}")
    for i in range(4):
        e(f"v_cvt_pk_bf16_f32 v{8+i}, v{40+2*i}, v{41+2*i}")
    e("v_lshrrev_b32 v3, 5, v1")
    e("v_lshlrev_b32 v3, 5, v3")
    e("v_lshrrev_b32 v4, 1, v2")
    e("v_add_u32 v3, v3, v4")
    e("v_lshlrev_b32 v3, 6, v3")
    e("v_and_b32 v4, 31, v1")
    e("v_add_u32 v3, v3, v4")
    e("v_and_b32 v4, 1, v2")
    e("v_lshl_add_u32 v3, v4, 5, v3")
    e("v_lshlrev_b32 v3, 4, v3")
    e("buffer_store_dwordx4 v[8:11], v3, s[20:23], 0 offen")
    e("s_waitcnt vmcnt(0)")
    lab(f"L_{name}_done")
    kernel_end(name, 96)
    launch(name, 512, 256)


def k_gemm(name, K, N, wsrc, asrc, epi, splitk=1, wsrc2=None, dst=None):
    KS = K // 16
    nchunks = K // 64 // splitk
    if epi == "geglu":
        ntiles = N // 64
    else:
        ntiles = N // 128
    mtiles = 16
    nwg = ntiles * mtiles * splitk
    kernel_begin(name)
    e(f"s_cmp_ge_u32 s2, {nwg}")
    e(f"s_cbranch_scc1 L_{name}_done")
    e(f"s_load_dwordx2 s[8:9], s[0:1], {A_WS}")
    e("s_waitcnt lgkmcnt(0)")
    srd_ws(12, 8, wsrc, K * N * 2)
    if wsrc2 is not None:
        srd_ws(16, 8, wsrc2, K * N * 2)
    srd_ws(20, 8, asrc, 2048 * K * 2)
    if epi == "q":
        srd_ws(24, 8, dst, 2048 * 4096 * 2)
    elif epi == "part":
        srd_ws(24, 8, dst, splitk * 2048 * N * 4)
    elif epi == "geglu":
        srd_ws(24, 8, dst, 2048 * N * 2)
    e("s_and_b32 s28, s2, 15")
    e("s_lshr_b32 s29, s2, 4")
    magic = (2**32 + ntiles - 1) // ntiles
    e(f"s_mul_hi_u32 s30, s29, {magic}")
    e(f"s_mul_i32 s31, s30, {ntiles}")
    e("s_sub_u32 s29, s29, s31")
    e("v_lshrrev_b32 v1, 6, v0")
    e("v_and_b32 v2, 63, v0")
    e("s_nop 0")
    e("v_readfirstlane_b32 s32, v1")
    if epi == "geglu":
        e("s_lshr_b32 s33, s32, 1")
        e("s_lshl_b32 s34, s29, 1")
        e("s_add_u32 s33, s33, s34")
    else:
        e("s_lshl_b32 s33, s29, 2")
        e("s_add_u32 s33, s33, s32")
    e(f"s_mul_i32 s33, s33, {KS * 1024}")
    e(f"s_mul_i32 s34, s30, {nchunks * 4096}")
    e("s_add_u32 s33, s33, s34")
    e("s_lshl_b32 s35, s28, 2")
    e("s_add_u32 s35, s35, s32")
    e(f"s_mul_i32 s35, s35, {KS * 1024}")
    e("s_add_u32 s35, s35, s34")
    e("v_lshlrev_b32 v3, 4, v2")
    e("v_add_u32 v4, s33, v3")
    e("v_add_u32 v5, s35, v3")
    e("s_lshl_b32 s36, s32, 12")
    if epi == "geglu":
        e("s_and_b32 s37, s32, 1")

    def issue_dma(stage_sreg_expr, soff):
        e("s_add_u32 m0, s40, s36")
        e("s_nop 0")
        if epi == "geglu":
            e("s_cmp_eq_u32 s37, 0")
            e(f"s_cbranch_scc0 {next_lbl('up')}")
            for i in range(4):
                e(f"buffer_load_dwordx4 v4, s[12:15], s{soff} offen offset:{1024*i} lds")
            e(f"s_branch {next_lbl('join', keep=True)}")
            lab(cur_lbl('up'))
            for i in range(4):
                e(f"buffer_load_dwordx4 v4, s[16:19], s{soff} offen offset:{1024*i} lds")
            lab(cur_lbl('join'))
        else:
            for i in range(4):
                e(f"buffer_load_dwordx4 v4, s[12:15], s{soff} offen offset:{1024*i} lds")
        e("s_add_u32 s41, s40, 16384")
        e("s_add_u32 m0, s41, s36")
        e("s_nop 0")
        for i in range(4):
            e(f"buffer_load_dwordx4 v5, s[20:23], s{soff} offen offset:{1024*i} lds")

    cnt = {}

    def next_lbl(t, keep=False):
        if not keep:
            cnt[t] = cnt.get(t, 0) + 1
        else:
            cnt[t] = cnt.get('up', 0)
        return f"L_{name}_{t}{cnt[t]}"

    def cur_lbl(t):
        return f"L_{name}_{t}{cnt[t]}"

    for i in range(64):
        e(f"v_mov_b32 v{64+i}, 0")
    e("v_and_b32 v6, 1, v1")
    e("v_lshlrev_b32 v6, 13, v6")
    e("v_add_u32 v6, v6, v3")
    e("v_lshrrev_b32 v7, 1, v1")
    e("v_lshlrev_b32 v7, 13, v7")
    e("v_add_u32 v7, v7, v3")
    e("v_add_u32 v7, 16384, v7")
    e("s_mov_b32 s40, 0")
    e("s_mov_b32 s42, 0")
    issue_dma(None, 42)
    e("s_mov_b32 s43, 0")
    lab(f"L_{name}_loop")
    e("s_waitcnt vmcnt(0)")
    e("s_barrier")
    e("s_add_u32 s44, s43, 1")
    e(f"s_cmp_lt_u32 s44, {nchunks}")
    e(f"s_cbranch_scc0 L_{name}_nodma")
    e("s_xor_b32 s40, s40, 32768")
    e("s_add_u32 s42, s42, 4096")
    issue_dma(None, 42)
    e("s_xor_b32 s40, s40, 32768")
    lab(f"L_{name}_nodma")
    e("v_add_u32 v8, s40, v6")
    e("v_add_u32 v9, s40, v7")
    for ks in range(4):
        e(f"ds_read_b128 v[16:19], v8 offset:{ks*1024}")
        e(f"ds_read_b128 v[20:23], v8 offset:{4096+ks*1024}")
        e(f"ds_read_b128 v[24:27], v9 offset:{ks*1024}")
        e(f"ds_read_b128 v[28:31], v9 offset:{4096+ks*1024}")
        e("s_waitcnt lgkmcnt(0)")
        for nbi in range(2):
            for mbi in range(2):
                a = 64 + (nbi * 2 + mbi) * 16
                e(f"v_mfma_f32_32x32x16_bf16 v[{a}:{a+15}], v[{16+4*nbi}:{19+4*nbi}], v[{24+4*mbi}:{27+4*mbi}], v[{a}:{a+15}]")
    e("s_xor_b32 s40, s40, 32768")
    e("s_add_u32 s43, s43, 1")
    e(f"s_cmp_lt_u32 s43, {nchunks}")
    e(f"s_cbranch_scc1 L_{name}_loop")
    e("s_nop 15")
    e("s_nop 3")
    e("v_and_b32 v10, 31, v2")
    e("v_lshrrev_b32 v11, 5, v2")
    if epi == "q":
        for nbi in range(2):
            for mbi in range(2):
                for g in range(4):
                    a = 64 + (nbi * 2 + mbi) * 16 + 4 * g
                    e(f"v_cvt_pk_bf16_f32 v12, v{a}, v{a+1}")
                    e(f"v_cvt_pk_bf16_f32 v13, v{a+2}, v{a+3}")
                    e("s_lshl_b32 s45, s29, 6")
                    e("s_lshl_b32 s46, s28, 2")
                    e("s_add_u32 s45, s45, s46")
                    e(f"s_add_u32 s45, s45, {mbi}")
                    e("s_lshr_b32 s46, s32, 1")
                    e("s_lshl_b32 s46, s46, 1")
                    e("s_add_u32 s45, s45, s46")
                    e("s_lshl_b32 s45, s45, 3")
                    e("s_and_b32 s46, s32, 1")
                    e("s_lshl_b32 s46, s46, 2")
                    e("s_add_u32 s45, s45, s46")
                    e(f"s_add_u32 s45, s45, {2*nbi + (g >> 1)}")
                    e("s_lshl_b32 s45, s45, 10")
                    e(f"v_lshl_add_u32 v14, v10, 4, s45")
                    e("v_lshl_add_u32 v14, v11, 3, v14")
                    e(f"buffer_store_dwordx2 v[12:13], v14, s[24:27], 0 offen offset:{512*(g&1)}")
                    e("s_nop 1")
    elif epi == "part":
        e("s_lshl_b32 s45, s28, 7")
        e("s_lshr_b32 s46, s32, 1")
        e("s_lshl_b32 s46, s46, 6")
        e("s_add_u32 s45, s45, s46")
        e(f"s_mul_i32 s47, s30, {2048}")
        e("s_add_u32 s45, s45, s47")
        e("v_add_u32 v14, s45, v10")
        e(f"s_mov_b32 s47, {N*4}")
        e("v_mul_lo_u32 v14, v14, s47")
        e("s_lshl_b32 s45, s29, 7")
        e("s_and_b32 s46, s32, 1")
        e("s_lshl_b32 s46, s46, 6")
        e("s_add_u32 s45, s45, s46")
        e("s_lshl_b32 s45, s45, 2")
        e("v_add_u32 v14, s45, v14")
        e("v_lshl_add_u32 v14, v11, 4, v14")
        for nbi in range(2):
            for mbi in range(2):
                for g in range(4):
                    a = 64 + (nbi * 2 + mbi) * 16 + 4 * g
                    off = mbi * 32 * N * 4 + (32 * nbi + 8 * g) * 4
                    if off < 4096:
                        e(f"buffer_store_dwordx4 v[{a}:{a+3}], v14, s[24:27], 0 offen offset:{off}")
                    else:
                        e(f"s_mov_b32 s47, {off}")
                        e(f"buffer_store_dwordx4 v[{a}:{a+3}], v14, s[24:27], s47 offen")
    elif epi == "geglu":
        KSO = N // 16
        for mbi in range(2):
            for r in range(16):
                gr = 64 + mbi * 16 + r
                ur = 64 + 32 + mbi * 16 + r
                e(f"v_mul_f32 v12, v{gr}, v{gr}")
                e("v_mov_b32 v13, 0x3d372713")
                e(f"v_fma_f32 v12, v12, v13, 1.0")
                e(f"v_mul_f32 v12, v12, v{gr}")
                e("v_mul_f32 v12, 0xc0135761, v12")
                e("v_exp_f32 v12, v12")
                e("s_nop 0")
                e("v_add_f32 v12, 1.0, v12")
                e("v_rcp_f32 v12, v12")
                e("s_nop 0")
                e(f"v_mul_f32 v12, v12, v{gr}")
                e(f"v_mul_f32 v{gr}, v12, v{ur}")
            for g in range(4):
                a = 64 + mbi * 16 + 4 * g
                e(f"v_cvt_pk_bf16_f32 v12, v{a}, v{a+1}")
                e(f"v_cvt_pk_bf16_f32 v13, v{a+2}, v{a+3}")
                e("s_lshl_b32 s45, s28, 2")
                e("s_lshr_b32 s46, s32, 1")
                e("s_lshl_b32 s46, s46, 1")
                e("s_add_u32 s45, s45, s46")
                e(f"s_add_u32 s45, s45, {mbi}")
                e(f"s_mul_i32 s45, s45, {KSO}")
                e("s_lshl_b32 s46, s29, 2")
                e("s_add_u32 s45, s45, s46")
                e("s_and_b32 s46, s32, 1")
                e("s_lshl_b32 s46, s46, 1")
                e("s_add_u32 s45, s45, s46")
                e(f"s_add_u32 s45, s45, {g >> 1}")
                e("s_lshl_b32 s45, s45, 10")
                e("v_lshl_add_u32 v14, v10, 4, s45")
                e("v_lshl_add_u32 v14, v11, 3, v14")
                e(f"buffer_store_dwordx2 v[12:13], v14, s[24:27], 0 offen offset:{512*(g&1)}")
                e("s_nop 1")
    e("s_waitcnt vmcnt(0)")
    lab(f"L_{name}_done")
    kernel_end(name, 128)
    launch(name, nwg, 256, 65536)


def k_attn():
    name = "k_attn_kernel"
    kernel_begin(name)
    e("s_cmp_ge_u32 s2, 256")
    e(f"s_cbranch_scc1 L_{name}_done")
    e(f"s_load_dwordx2 s[8:9], s[0:1], {A_WS}")
    e("s_waitcnt lgkmcnt(0)")
    srd_ws(12, 8, KP, 4194304)
    srd_ws(16, 8, VP, 4194304)
    srd_ws(20, 8, QF, 2048 * 4096 * 2)
    srd_ws(24, 8, OF, 2048 * 4096 * 2)
    e("s_and_b32 s28, s2, 7")
    e("s_lshr_b32 s29, s2, 3")
    e("s_and_b32 s29, s29, 3")
    e("s_lshl_b32 s30, s28, 2")
    e("s_add_u32 s29, s29, s30")
    e("s_lshr_b32 s30, s2, 5")
    e("v_lshrrev_b32 v1, 6, v0")
    e("v_and_b32 v2, 63, v0")
    e("s_nop 0")
    e("v_readfirstlane_b32 s32, v1")
    e("v_lshlrev_b32 v3, 4, v2")
    e("s_lshl_b32 s33, s29, 6")
    e("s_lshl_b32 s34, s30, 3")
    e("s_add_u32 s33, s33, s34")
    e("s_add_u32 s33, s33, s32")
    e("s_lshl_b32 s33, s33, 13")
    e("v_add_u32 v4, s33, v3")
    for ks in range(8):
        e(f"buffer_load_dwordx4 v[{32+4*ks}:{35+4*ks}], v4, s[20:23], 0 offen offset:{1024*ks%4096}" if ks < 4 else
          f"buffer_load_dwordx4 v[{32+4*ks}:{35+4*ks}], v4, s[20:23], 0 offen offset:{1024*(ks-4)}")
        if ks == 3:
            e("v_add_u32 v4, 4096, v4")
    e("s_lshl_b32 s34, s28, 19")
    e("s_lshl_b32 s35, s32, 11")
    e("s_add_u32 s34, s34, s35")
    e("v_add_u32 v5, s34, v3")

    def dma(soff):
        e("s_add_u32 m0, s40, s35")
        e("s_nop 0")
        e(f"buffer_load_dwordx4 v5, s[12:15], s{soff} offen lds")
        e(f"buffer_load_dwordx4 v5, s[12:15], s{soff} offen offset:1024 lds")
        e("s_add_u32 s41, s40, 16384")
        e("s_add_u32 m0, s41, s35")
        e("s_nop 0")
        e(f"buffer_load_dwordx4 v5, s[16:19], s{soff} offen lds")
        e(f"buffer_load_dwordx4 v5, s[16:19], s{soff} offen offset:1024 lds")

    for i in range(64):
        e(f"v_mov_b32 v{64+i}, 0")
    e("v_mov_b32 v6, 0xff800000")
    e("v_mov_b32 v7, 0")
    e("s_mov_b32 s44, 0x3e0553f5")
    e("s_mov_b32 s40, 0")
    e("s_mov_b32 s42, 0")
    dma(42)
    e("s_mov_b32 s43, 0")
    lab(f"L_{name}_loop")
    e("s_waitcnt vmcnt(0)")
    e("s_barrier")
    e("s_add_u32 s45, s43, 1")
    e("s_cmp_lt_u32 s45, 32")
    e(f"s_cbranch_scc0 L_{name}_nodma")
    e("s_xor_b32 s40, s40, 32768")
    e("s_add_u32 s42, s42, 16384")
    dma(42)
    e("s_xor_b32 s40, s40, 32768")
    lab(f"L_{name}_nodma")
    e("v_add_u32 v8, s40, v3")
    for kb in range(2):
        for ks in range(8):
            f = 176 + 4 * ks
            e(f"ds_read_b128 v[{f}:{f+3}], v8 offset:{(kb*8+ks)*1024}")
        for ks in range(8):
            f = 176 + 4 * ks
            e(f"s_waitcnt lgkmcnt({7-ks})")
            s = 128 + 16 * kb
            c = f"v[{s}:{s+15}]" if ks else "0"
            e(f"v_mfma_f32_32x32x16_bf16 v[{s}:{s+15}], v[{f}:{f+3}], v[{32+4*ks}:{35+4*ks}], {c}")
    e("s_nop 15")
    e("v_max_f32 v9, v128, v129")
    for r in range(130, 160, 2):
        e(f"v_max3_f32 v9, v9, v{r}, v{r+1}")
    e("v_mov_b32 v10, v9")
    e("s_nop 1")
    e("v_permlane32_swap_b32 v9, v10")
    e("v_max_f32 v9, v9, v10")
    e("v_max_f32 v9, v9, v6")
    e("v_sub_f32 v10, v9, v6")
    e("v_mul_f32 v10, s44, v10")
    e("v_mov_b32 v11, 0x41000000")
    e("v_cmp_gt_f32 vcc, v10, v11")
    e(f"s_cbranch_vccz L_{name}_norescale")
    e("v_sub_f32 v10, v6, v9")
    e("v_mul_f32 v10, s44, v10")
    e("v_exp_f32 v10, v10")
    e("v_mov_b32 v6, v9")
    e("v_mul_f32 v7, v7, v10")
    for i in range(64):
        e(f"v_mul_f32 v{64+i}, v{64+i}, v10")
    lab(f"L_{name}_norescale")
    e("v_mul_f32 v11, s44, v6")
    for r in range(32):
        e(f"v_fma_f32 v{128+r}, v{128+r}, s44, -v11")
        e(f"v_exp_f32 v{128+r}, v{128+r}")
    e("s_nop 0")
    for r in range(32):
        e(f"v_add_f32 v7, v7, v{128+r}")
    for r in range(16):
        e(f"v_cvt_pk_bf16_f32 v{160+r}, v{128+2*r}, v{129+2*r}")
    for jj in range(4):
        for db in range(4):
            f = 176 + 4 * db
            e(f"ds_read_b128 v[{f}:{f+3}], v8 offset:{16384 + (jj*4+db)*1024}")
        for db in range(4):
            f = 176 + 4 * db
            e(f"s_waitcnt lgkmcnt({3-db})")
            a = 64 + 16 * db
            e(f"v_mfma_f32_32x32x16_bf16 v[{a}:{a+15}], v[{f}:{f+3}], v[{160+4*jj}:{163+4*jj}], v[{a}:{a+15}]")
    e("s_xor_b32 s40, s40, 32768")
    e("s_add_u32 s43, s43, 1")
    e("s_cmp_lt_u32 s43, 32")
    e(f"s_cbranch_scc1 L_{name}_loop")
    e("s_nop 15")
    e("v_mov_b32 v10, v7")
    e("s_nop 1")
    e("v_permlane32_swap_b32 v7, v10")
    e("v_add_f32 v7, v7, v10")
    e("v_rcp_f32 v7, v7")
    e("s_nop 0")
    e("v_and_b32 v10, 31, v2")
    e("v_lshrrev_b32 v11, 5, v2")
    e("s_lshl_b32 s45, s30, 3")
    e("s_add_u32 s45, s45, s32")
    e("s_lshl_b32 s45, s45, 8")
    e("s_lshl_b32 s46, s29, 3")
    e("s_add_u32 s45, s45, s46")
    e("s_lshl_b32 s45, s45, 10")
    e("v_lshl_add_u32 v14, v10, 4, s45")
    e("v_lshl_add_u32 v14, v11, 3, v14")
    for db in range(4):
        for g in range(4):
            a = 64 + 16 * db + 4 * g
            for k in range(4):
                e(f"v_mul_f32 v{a+k}, v{a+k}, v7")
            e(f"v_cvt_pk_bf16_f32 v12, v{a}, v{a+1}")
            e(f"v_cvt_pk_bf16_f32 v13, v{a+2}, v{a+3}")
            off = (2 * db + (g >> 1)) * 1024 + 512 * (g & 1)
            if off < 4096:
                e(f"buffer_store_dwordx2 v[12:13], v14, s[24:27], 0 offen offset:{off}")
            else:
                e(f"s_mov_b32 s47, 4096")
                e(f"buffer_store_dwordx2 v[12:13], v14, s[24:27], s47 offen offset:{off-4096}")
            e("s_nop 1")
    e("s_waitcnt vmcnt(0)")
    lab(f"L_{name}_done")
    kernel_end(name, 208)
    launch(name, 256, 512, 65536)


def k_final():
    name = "k_final_kernel"
    kernel_begin(name)
    e("s_cmp_ge_u32 s2, 512")
    e(f"s_cbranch_scc1 L_{name}_done")
    e(f"s_load_dwordx2 s[4:5], s[0:1], {A_OUT}")
    e(f"s_load_dwordx2 s[8:9], s[0:1], {A_WS}")
    e("s_waitcnt lgkmcnt(0)")
    srd(12, 4, 2048 * 512 * 2)
    srd_ws(16, 8, MOD, 3072 * 4)
    srd_ws(24, 8, PART2, 4 * 2048 * 512 * 4)
    srd_ws(28, 8, X2, 2048 * 512 * 4)
    e("v_lshrrev_b32 v1, 6, v0")
    e("s_lshl_b32 s3, s2, 2")
    e("v_add_u32 v1, s3, v1")
    e("v_and_b32 v2, 63, v0")
    e("v_lshlrev_b32 v4, 5, v2")
    e(f"v_add_u32 v5, {5*512*4}, v4")
    e("buffer_load_dwordx4 v[28:31], v5, s[16:19], 0 offen")
    e("buffer_load_dwordx4 v[32:35], v5, s[16:19], 0 offen offset:16")
    e("v_lshlrev_b32 v6, 11, v1")
    e("v_add_u32 v6, v6, v4")
    e("buffer_load_dwordx4 v[40:43], v6, s[28:31], 0 offen")
    e("buffer_load_dwordx4 v[44:47], v6, s[28:31], 0 offen offset:16")
    for p in range(4):
        e(f"s_mov_b32 s33, {p * 2048 * 512 * 4}")
        e(f"buffer_load_dwordx4 v[{48+8*p}:{51+8*p}], v6, s[24:27], s33 offen")
        e(f"buffer_load_dwordx4 v[{52+8*p}:{55+8*p}], v6, s[24:27], s33 offen offset:16")
    e("s_waitcnt vmcnt(0)")
    for i in range(8):
        e(f"v_add_f32 v{48+i}, v{48+i}, v{56+i}")
        e(f"v_add_f32 v{64+i}, v{64+i}, v{72+i}")
        e(f"v_add_f32 v{48+i}, v{48+i}, v{64+i}")
        e(f"v_fmac_f32 v{40+i}, v{48+i}, v{28+i}")
    for i in range(4):
        e(f"v_cvt_pk_bf16_f32 v{8+i}, v{40+2*i}, v{41+2*i}")
    e("v_lshlrev_b32 v3, 10, v1")
    e("v_lshl_add_u32 v3, v2, 4, v3")
    e("buffer_store_dwordx4 v[8:11], v3, s[12:15], 0 offen")
    e("s_waitcnt vmcnt(0)")
    lab(f"L_{name}_done")
    kernel_end(name, 96)
    launch(name, 512, 256)


def main():
    k_mod()
    k_prep_k()
    k_prep_v()
    k_prep_w("k_prepwq_kernel", A_WQ, 512, 4096, WQP)
    k_prep_w("k_prepwo_kernel", A_WO, 4096, 512, WOP)
    k_prep_w("k_prepwg_kernel", A_WG, 512, 1792, WGP)
    k_prep_w("k_prepwu_kernel", A_WU, 512, 1792, WUP)
    k_prep_w("k_prepwd_kernel", A_WD, 1792, 512, WDP)
    k_ln("k_ln1_kernel", 1)
    k_gemm("k_qproj_kernel", 512, 4096, WQP, H1, "q", dst=QF)
    k_attn()
    k_gemm("k_oproj_kernel", 4096, 512, WOP, OF, "part", splitk=4, dst=PART)
    k_ln("k_ln2_kernel", 2)
    k_gemm("k_ffn1_kernel", 512, 1792, WGP, H2, "geglu", wsrc2=WUP, dst=HM)
    k_gemm("k_ffn2_kernel", 1792, 512, WDP, HM, "part", splitk=4, dst=PART2)
    k_final()
    hdr = ["; adaLN + GQA attention + GEGLU block, multi-kernel launch list (generated by gen/gen.py)"] + launches
    txt = "\n".join(hdr) + "\n.amdgcn_target \"amdgcn-amd-amdhsa--gfx950\"\n.text\n" + "\n".join(lines) + \
        "\n.section .rodata,\"a\"\n.p2align 6\n" + "\n.p2align 6\n".join(descs) + "\n"
    open(OUT, "w").write(txt)


main()
```

```python
import sys

OUT = "adaLN_cond__gqa_block_cached__glu_gated_geglu__prompt.s"

MOD = 0x0
KP = 0x00100000
VP = 0x00500000
WQP = 0x00900000
WOP = 0x00D00000
WGP = 0x01100000
WUP = 0x01300000
WDP = 0x01500000
H1 = 0x01700000
QF = 0x01900000
OF = 0x02900000
PART = 0x03900000
X2 = 0x04900000
H2 = 0x04D00000
HM = 0x04F00000
PART2 = 0x05700000
WS_SIZE = 268435456

A_X, A_K, A_V, A_WQ, A_WO, A_BX, A_WG, A_WU, A_WD, A_C, A_WMOD, A_OUT, A_DBG, A_WS = [8 * i for i in range(14)]

lines = []
launches = []


def e(s):
    lines.append("    " + s)


def lab(s):
    lines.append(s + ":")


def srd(dst, base, size):
    e(f"s_mov_b32 s{dst}, s{base}")
    e(f"s_and_b32 s{dst+1}, s{base+1}, 0xffff")
    e(f"s_mov_b32 s{dst+2}, {size}")
    e(f"s_mov_b32 s{dst+3}, 0x00020000")


def srd_ws(dst, wsreg, off, size):
    e(f"s_add_u32 s{dst}, s{wsreg}, {off}")
    e(f"s_addc_u32 s{dst+1}, s{wsreg+1}, 0")
    e(f"s_and_b32 s{dst+1}, s{dst+1}, 0xffff")
    e(f"s_mov_b32 s{dst+2}, {size}")
    e(f"s_mov_b32 s{dst+3}, 0x00020000")


def kernel_begin(name):
    lines.append(f".globl {name}")
    lines.append(".p2align 8")
    lines.append(f".type {name},@function")
    lab(name)


descs = []


def kernel_end(name, vgprs, sgprs=96, agprs=0):
    e("s_endpgm")
    acc = (vgprs + 3) // 4 * 4
    nfv = acc + agprs if agprs else vgprs
    descs.append(f""".amdhsa_kernel {name}
  .amdhsa_next_free_vgpr {nfv}
  .amdhsa_next_free_sgpr {sgprs}
  .amdhsa_accum_offset {acc}
  .amdhsa_group_segment_fixed_size 0
  .amdhsa_kernarg_size 112
  .amdhsa_user_sgpr_count 2
  .amdhsa_user_sgpr_kernarg_segment_ptr 1
  .amdhsa_system_sgpr_workgroup_id_x 1
.end_amdhsa_kernel""")


def launch(name, grid, block, lds=0):
    launches.append(f"; @launch kernel={name} grid=({grid},1,1) block=({block},1,1) lds={lds}")


def k_mod():
    lab("B_mod")
    e(f"s_load_dwordx2 s[4:5], s[0:1], {A_C}")
    e(f"s_load_dwordx2 s[6:7], s[0:1], {A_WMOD}")
    e(f"s_load_dwordx2 s[8:9], s[0:1], {A_WS}")
    e("s_waitcnt lgkmcnt(0)")
    srd(12, 4, 1024)
    srd(16, 6, 512 * 3072 * 2)
    srd_ws(20, 8, MOD, 3072 * 4)
    e("v_lshlrev_b32 v1, 2, v0")
    e("buffer_load_dword v2, v1, s[12:15], 0 offen")
    e("s_waitcnt vmcnt(0)")
    e("v_lshlrev_b32 v3, 16, v2")
    e("v_and_b32 v4, 0xffff0000, v2")
    for r in (3, 4):
        e(f"v_mul_f32 v5, 0xbfb8aa3b, v{r}")
        e("v_exp_f32 v5, v5")
        e("s_nop 0")
        e("v_add_f32 v5, 1.0, v5")
        e("v_rcp_f32 v5, v5")
        e("s_nop 0")
        e(f"v_mul_f32 v{r}, v{r}, v5")
    e("v_cvt_pk_bf16_f32 v5, v3, v4")
    e("v_lshlrev_b32 v14, 16, v5")
    e("v_and_b32 v15, 0xffff0000, v5")
    e("v_lshlrev_b32 v6, 3, v0")
    e("ds_write_b64 v6, v[14:15]")
    e("s_waitcnt lgkmcnt(0)")
    e("s_barrier")
    e("v_lshrrev_b32 v7, 4, v0")
    e("v_and_b32 v8, 15, v0")
    e("v_lshlrev_b32 v9, 7, v7")
    e("s_lshl_b32 s3, s2, 6")
    e("v_lshlrev_b32 v10, 2, v8")
    e("v_add_u32 v10, s3, v10")
    e("v_mov_b32 v11, 6144")
    e("v_lshlrev_b32 v12, 5, v7")
    e("v_mul_lo_u32 v12, v12, v11")
    e("v_add_u32 v10, v10, v12")
    e("v_mov_b32 v20, 0")
    e("v_mov_b32 v21, 0")
    for half in range(2):
        for u in range(16):
            e(f"buffer_load_dword v{48+u}, v10, s[16:19], 0 offen")
            e("v_add_u32 v10, 6144, v10")
        for u in range(4):
            e(f"ds_read_b128 v[{24+4*u}:{27+4*u}], v9 offset:{half*64+16*u}")
        e("s_waitcnt vmcnt(0) lgkmcnt(0)")
        for u in range(16):
            e(f"v_lshlrev_b32 v40, 16, v{48+u}")
            e(f"v_and_b32 v41, 0xffff0000, v{48+u}")
            e(f"v_fmac_f32 v20, v40, v{24+u}")
            e(f"v_fmac_f32 v21, v41, v{24+u}")
    e("v_lshlrev_b32 v9, 3, v0")
    e("v_add_u32 v9, 2048, v9")
    e("ds_write_b64 v9, v[20:21]")
    e("s_waitcnt lgkmcnt(0)")
    e("s_barrier")
    e("v_lshlrev_b32 v9, 3, v8")
    e("v_add_u32 v9, 2048, v9")
    for g in range(16):
        e(f"ds_read_b64 v[{24+2*g}:{25+2*g}], v9 offset:{128*g}")
    e("s_waitcnt lgkmcnt(0)")
    for g in range(1, 16):
        e(f"v_add_f32 v24, v24, v{24+2*g}")
        e(f"v_add_f32 v25, v25, v{25+2*g}")
    e("v_cvt_pk_bf16_f32 v26, v24, v25")
    e("v_lshlrev_b32 v24, 16, v26")
    e("v_and_b32 v25, 0xffff0000, v26")
    e("s_lshl_b32 s3, s2, 7")
    e("v_lshlrev_b32 v9, 3, v8")
    e("v_add_u32 v9, s3, v9")
    e("v_cmp_gt_u32 vcc, 16, v0")
    e("s_and_saveexec_b64 s[24:25], vcc")
    e("buffer_store_dwordx2 v[24:25], v9, s[20:23], 0 offen")
    e("s_waitcnt vmcnt(0)")
    e("s_endpgm")


def k_prep_w(name, argoff, K, N, dst):
    KS = K // 16
    nfr = (N // 32) * KS
    lab(f"B_{name}")
    e(f"s_load_dwordx2 s[4:5], s[0:1], {argoff}")
    e(f"s_load_dwordx2 s[8:9], s[0:1], {A_WS}")
    e("s_waitcnt lgkmcnt(0)")
    srd(12, 4, K * N * 2)
    srd_ws(16, 8, dst, K * N * 2)
    e("v_lshrrev_b32 v1, 6, v0")
    e("s_lshl_b32 s3, s2, 2")
    e("v_add_u32 v1, s3, v1")
    e("v_and_b32 v2, 63, v0")
    magic = (2**32 + KS - 1) // KS
    e(f"s_mov_b32 s20, {magic}")
    e("v_mul_hi_u32 v3, v1, s20")
    e(f"s_mov_b32 s21, {KS}")
    e("v_mul_lo_u32 v4, v3, s21")
    e("v_sub_u32 v4, v1, v4")
    e("v_lshrrev_b32 v5, 5, v2")
    e("v_lshlrev_b32 v5, 3, v5")
    e("v_lshl_add_u32 v5, v4, 4, v5")
    e(f"s_mov_b32 s21, {N * 2}")
    e("v_mul_lo_u32 v5, v5, s21")
    e("v_and_b32 v6, 31, v2")
    e("v_lshl_add_u32 v6, v3, 5, v6")
    e("v_lshl_add_u32 v5, v6, 1, v5")
    for i in range(8):
        e(f"buffer_load_ushort v{16 + i}, v5, s[12:15], 0 offen")
        e("v_add_u32 v5, s21, v5")
    e("v_lshlrev_b32 v7, 10, v1")
    e("v_lshl_add_u32 v7, v2, 4, v7")
    e("s_waitcnt vmcnt(0)")
    for i in range(4):
        e(f"v_lshl_or_b32 v{8+i}, v{17+2*i}, 16, v{16+2*i}")
    e("buffer_store_dwordx4 v[8:11], v7, s[16:19], 0 offen")
    e("s_waitcnt vmcnt(0)")
    e("s_endpgm")


def k_prep_k():
    name = "k_prepk_kernel"
    lab(f"B_{name}")
    e(f"s_load_dwordx2 s[4:5], s[0:1], {A_K}")
    e(f"s_load_dwordx2 s[8:9], s[0:1], {A_WS}")
    e("s_waitcnt lgkmcnt(0)")
    srd(12, 4, 4194304)
    srd_ws(16, 8, KP, 4194304)
    e("v_lshrrev_b32 v1, 6, v0")
    e("s_lshl_b32 s3, s2, 2")
    e("v_add_u32 v1, s3, v1")
    e("v_and_b32 v2, 63, v0")
    e("v_lshrrev_b32 v3, 3, v1")
    e("v_and_b32 v4, 7, v1")
    e("v_and_b32 v5, 31, v2")
    e("v_lshl_add_u32 v5, v3, 5, v5")
    e("v_lshlrev_b32 v5, 8, v5")
    e("v_lshl_add_u32 v5, v4, 5, v5")
    e("v_lshrrev_b32 v6, 5, v2")
    e("v_lshl_add_u32 v5, v6, 4, v5")
    e("buffer_load_dwordx4 v[8:11], v5, s[12:15], 0 offen")
    e("v_lshlrev_b32 v7, 10, v1")
    e("v_lshl_add_u32 v7, v2, 4, v7")
    e("s_waitcnt vmcnt(0)")
    e("buffer_store_dwordx4 v[8:11], v7, s[16:19], 0 offen")
    e("s_waitcnt vmcnt(0)")
    e("s_endpgm")


def k_prep_v():
    name = "k_prepv_kernel"
    lab(f"B_{name}")
    e(f"s_load_dwordx2 s[4:5], s[0:1], {A_V}")
    e(f"s_load_dwordx2 s[8:9], s[0:1], {A_WS}")
    e("s_waitcnt lgkmcnt(0)")
    srd(12, 4, 4194304)
    srd_ws(16, 8, VP, 4194304)
    e("v_lshrrev_b32 v1, 6, v0")
    e("s_lshl_b32 s3, s2, 2")
    e("v_add_u32 v1, s3, v1")
    e("v_and_b32 v2, 63, v0")
    e("v_lshrrev_b32 v3, 2, v1")
    e("v_and_b32 v4, 3, v1")
    e("v_lshrrev_b32 v6, 5, v2")
    e("v_lshlrev_b32 v6, 2, v6")
    e("v_lshl_add_u32 v5, v3, 4, v6")
    e("v_lshlrev_b32 v5, 8, v5")
    e("v_and_b32 v6, 31, v2")
    e("v_lshl_add_u32 v6, v4, 5, v6")
    e("v_lshl_add_u32 v5, v6, 1, v5")
    for i in range(8):
        off = (8 * (i >> 2) + (i & 3)) * 256
        e(f"buffer_load_ushort v{16 + i}, v5, s[12:15], 0 offen offset:{off}")
    e("v_lshlrev_b32 v7, 10, v1")
    e("v_lshl_add_u32 v7, v2, 4, v7")
    e("s_waitcnt vmcnt(0)")
    for i in range(4):
        e(f"v_lshl_or_b32 v{8+i}, v{17+2*i}, 16, v{16+2*i}")
    e("buffer_store_dwordx4 v[8:11], v7, s[16:19], 0 offen")
    e("s_waitcnt vmcnt(0)")
    e("s_endpgm")


def k_ln(name, mode):
    kernel_begin(name)
    e("s_cmp_ge_u32 s2, 512")
    e(f"s_cbranch_scc1 L_{name}_done")
    e(f"s_load_dwordx2 s[4:5], s[0:1], {A_X}")
    e(f"s_load_dwordx2 s[8:9], s[0:1], {A_WS}")
    e("s_waitcnt lgkmcnt(0)")
    srd(12, 4, 2048 * 512 * 2)
    srd_ws(16, 8, MOD, 3072 * 4)
    srd_ws(20, 8, H1 if mode == 1 else H2, 2048 * 512 * 2)
    if mode == 2:
        srd_ws(24, 8, PART, 4 * 2048 * 512 * 4)
        srd_ws(28, 8, X2, 2048 * 512 * 4)
    e("v_lshrrev_b32 v1, 6, v0")
    e("s_lshl_b32 s3, s2, 2")
    e("v_add_u32 v1, s3, v1")
    e("v_and_b32 v2, 63, v0")
    e("v_lshlrev_b32 v3, 10, v1")
    e("v_lshl_add_u32 v3, v2, 4, v3")
    e("buffer_load_dwordx4 v[8:11], v3, s[12:15], 0 offen")
    e("v_lshlrev_b32 v4, 5, v2")
    sh, sc, ga = (0, 512, 1024) if mode == 1 else (3 * 512, 4 * 512, 2 * 512)
    e(f"v_add_u32 v5, {sh*4}, v4")
    e("buffer_load_dwordx4 v[12:15], v5, s[16:19], 0 offen")
    e("buffer_load_dwordx4 v[16:19], v5, s[16:19], 0 offen offset:16")
    e(f"v_add_u32 v5, {sc*4}, v4")
    e("buffer_load_dwordx4 v[20:23], v5, s[16:19], 0 offen")
    e("buffer_load_dwordx4 v[24:27], v5, s[16:19], 0 offen offset:16")
    if mode == 2:
        e(f"v_add_u32 v5, {ga*4}, v4")
        e("buffer_load_dwordx4 v[28:31], v5, s[16:19], 0 offen")
        e("buffer_load_dwordx4 v[32:35], v5, s[16:19], 0 offen offset:16")
        e("v_lshlrev_b32 v6, 11, v1")
        e("v_add_u32 v6, v6, v4")
        for p in range(4):
            e(f"s_mov_b32 s33, {p * 2048 * 512 * 4}")
            e(f"buffer_load_dwordx4 v[{48+8*p}:{51+8*p}], v6, s[24:27], s33 offen")
            e(f"buffer_load_dwordx4 v[{52+8*p}:{55+8*p}], v6, s[24:27], s33 offen offset:16")
    e("s_waitcnt vmcnt(0)")
    for i in range(4):
        e(f"v_lshlrev_b32 v{40+2*i}, 16, v{8+i}")
        e(f"v_and_b32 v{41+2*i}, 0xffff0000, v{8+i}")
    if mode == 2:
        for i in range(8):
            e(f"v_add_f32 v{48+i}, v{48+i}, v{56+i}")
            e(f"v_add_f32 v{64+i}, v{64+i}, v{72+i}")
            e(f"v_add_f32 v{48+i}, v{48+i}, v{64+i}")
            e(f"v_fmac_f32 v{40+i}, v{48+i}, v{28+i}")
        for i in range(4):
            e(f"v_cvt_pk_bf16_f32 v36, v{40+2*i}, v{41+2*i}")
            e(f"v_lshlrev_b32 v{40+2*i}, 16, v36")
            e(f"v_and_b32 v{41+2*i}, 0xffff0000, v36")
        e("buffer_store_dwordx4 v[40:43], v6, s[28:31], 0 offen")
        e("buffer_store_dwordx4 v[44:47], v6, s[28:31], 0 offen offset:16")

    def wave_sum(reg):
        for off in (0x041F, 0x081F, 0x101F, 0x201F, 0x401F):
            e(f"ds_swizzle_b32 v37, v{reg} offset:{off}")
            e("s_waitcnt lgkmcnt(0)")
            e(f"v_add_f32 v{reg}, v{reg}, v37")
        e(f"v_mov_b32 v37, v{reg}")
        e("s_nop 1")
        e(f"v_permlane32_swap_b32 v{reg}, v37")
        e(f"v_add_f32 v{reg}, v{reg}, v37")

    e("v_add_f32 v36, v40, v41")
    for i in range(2, 8):
        e(f"v_add_f32 v36, v36, v{40+i}")
    wave_sum(36)
    e("v_mul_f32 v36, 0x3b000000, v36")
    for i in range(8):
        e(f"v_sub_f32 v{40+i}, v{40+i}, v36")
    e("v_mul_f32 v38, v40, v40")
    for i in range(1, 8):
        e(f"v_fmac_f32 v38, v{40+i}, v{40+i}")
    wave_sum(38)
    e("v_mov_b32 v39, 0x3727c5ac")
    e("v_fmac_f32 v39, 0x3b000000, v38")
    e("v_rsq_f32 v39, v39")
    e("s_nop 0")
    for i in range(8):
        e(f"v_mul_f32 v{40+i}, v{40+i}, v39")
        e(f"v_add_f32 v{20+i}, 1.0, v{20+i}")
        e(f"v_fma_f32 v{40+i}, v{40+i}, v{20+i}, v{12+i}")
    for i in range(4):
        e(f"v_cvt_pk_bf16_f32 v{8+i}, v{40+2*i}, v{41+2*i}")
    e("v_lshrrev_b32 v3, 5, v1")
    e("v_lshlrev_b32 v3, 5, v3")
    e("v_lshrrev_b32 v4, 1, v2")
    e("v_add_u32 v3, v3, v4")
    e("v_lshlrev_b32 v3, 6, v3")
    e("v_and_b32 v4, 31, v1")
    e("v_add_u32 v3, v3, v4")
    e("v_and_b32 v4, 1, v2")
    e("v_lshl_add_u32 v3, v4, 5, v3")
    e("v_lshlrev_b32 v3, 4, v3")
    e("buffer_store_dwordx4 v[8:11], v3, s[20:23], 0 offen")
    e("s_waitcnt vmcnt(0)")
    lab(f"L_{name}_done")
    kernel_end(name, 96)
    launch(name, 512, 256)


def k_gemm(name, K, N, wsrc, asrc, epi, splitk=1, wsrc2=None, dst=None):
    KS = K // 16
    nchunks = K // 64 // splitk
    if epi == "geglu":
        ntiles = N // 64
    else:
        ntiles = N // 128
    mtiles = 16
    nwg = ntiles * mtiles * splitk
    kernel_begin(name)
    e(f"s_cmp_ge_u32 s2, {nwg}")
    e(f"s_cbranch_scc1 L_{name}_done")
    e(f"s_load_dwordx2 s[8:9], s[0:1], {A_WS}")
    e("s_waitcnt lgkmcnt(0)")
    srd_ws(12, 8, wsrc, K * N * 2)
    if wsrc2 is not None:
        srd_ws(16, 8, wsrc2, K * N * 2)
    srd_ws(20, 8, asrc, 2048 * K * 2)
    if epi == "q":
        srd_ws(24, 8, dst, 2048 * 4096 * 2)
    elif epi == "part":
        srd_ws(24, 8, dst, splitk * 2048 * N * 4)
    elif epi == "geglu":
        srd_ws(24, 8, dst, 2048 * N * 2)
    e("s_and_b32 s28, s2, 15")
    e("s_lshr_b32 s29, s2, 4")
    magic = (2**32 + ntiles - 1) // ntiles
    e(f"s_mul_hi_u32 s30, s29, {magic}")
    e(f"s_mul_i32 s31, s30, {ntiles}")
    e("s_sub_u32 s29, s29, s31")
    e("v_lshrrev_b32 v1, 6, v0")
    e("v_and_b32 v2, 63, v0")
    e("s_nop 0")
    e("v_readfirstlane_b32 s32, v1")
    if epi == "geglu":
        e("s_lshr_b32 s33, s32, 1")
        e("s_lshl_b32 s34, s29, 1")
        e("s_add_u32 s33, s33, s34")
    else:
        e("s_lshl_b32 s33, s29, 2")
        e("s_add_u32 s33, s33, s32")
    e(f"s_mul_i32 s33, s33, {KS * 1024}")
    e(f"s_mul_i32 s34, s30, {nchunks * 4096}")
    e("s_add_u32 s33, s33, s34")
    e("s_lshl_b32 s35, s28, 2")
    e("s_add_u32 s35, s35, s32")
    e(f"s_mul_i32 s35, s35, {KS * 1024}")
    e("s_add_u32 s35, s35, s34")
    e("v_lshlrev_b32 v3, 4, v2")
    e("v_add_u32 v4, s33, v3")
    e("v_add_u32 v5, s35, v3")
    e("s_lshl_b32 s36, s32, 12")
    if epi == "geglu":
        e("s_and_b32 s37, s32, 1")

    def issue_dma(stage_sreg_expr, soff):
        e("s_add_u32 m0, s40, s36")
        e("s_nop 0")
        if epi == "geglu":
            e("s_cmp_eq_u32 s37, 0")
            e(f"s_cbranch_scc0 {next_lbl('up')}")
            for i in range(4):
                e(f"buffer_load_dwordx4 v4, s[12:15], s{soff} offen offset:{1024*i} lds")
            e(f"s_branch {next_lbl('join', keep=True)}")
            lab(cur_lbl('up'))
            for i in range(4):
                e(f"buffer_load_dwordx4 v4, s[16:19], s{soff} offen offset:{1024*i} lds")
            lab(cur_lbl('join'))
        else:
            for i in range(4):
                e(f"buffer_load_dwordx4 v4, s[12:15], s{soff} offen offset:{1024*i} lds")
        e("s_add_u32 s41, s40, 16384")
        e("s_add_u32 m0, s41, s36")
        e("s_nop 0")
        for i in range(4):
            e(f"buffer_load_dwordx4 v5, s[20:23], s{soff} offen offset:{1024*i} lds")

    cnt = {}

    def next_lbl(t, keep=False):
        if not keep:
            cnt[t] = cnt.get(t, 0) + 1
        else:
            cnt[t] = cnt.get('up', 0)
        return f"L_{name}_{t}{cnt[t]}"

    def cur_lbl(t):
        return f"L_{name}_{t}{cnt[t]}"

    for i in range(64):
        e(f"v_mov_b32 v{64+i}, 0")
    e("v_and_b32 v6, 1, v1")
    e("v_lshlrev_b32 v6, 13, v6")
    e("v_add_u32 v6, v6, v3")
    e("v_lshrrev_b32 v7, 1, v1")
    e("v_lshlrev_b32 v7, 13, v7")
    e("v_add_u32 v7, v7, v3")
    e("v_add_u32 v7, 16384, v7")
    e("s_mov_b32 s40, 0")
    e("s_mov_b32 s42, 0")
    issue_dma(None, 42)
    e("s_mov_b32 s43, 0")
    lab(f"L_{name}_loop")
    e("s_waitcnt vmcnt(0)")
    e("s_barrier")
    e("s_add_u32 s44, s43, 1")
    e(f"s_cmp_lt_u32 s44, {nchunks}")
    e(f"s_cbranch_scc0 L_{name}_nodma")
    e("s_xor_b32 s40, s40, 32768")
    e("s_add_u32 s42, s42, 4096")
    issue_dma(None, 42)
    e("s_xor_b32 s40, s40, 32768")
    lab(f"L_{name}_nodma")
    e("v_add_u32 v8, s40, v6")
    e("v_add_u32 v9, s40, v7")
    def rd(ks):
        o = 16 + 16 * (ks & 1)
        e(f"ds_read_b128 v[{o}:{o+3}], v8 offset:{ks*1024}")
        e(f"ds_read_b128 v[{o+4}:{o+7}], v8 offset:{4096+ks*1024}")
        e(f"ds_read_b128 v[{o+8}:{o+11}], v9 offset:{ks*1024}")
        e(f"ds_read_b128 v[{o+12}:{o+15}], v9 offset:{4096+ks*1024}")
    rd(0)
    for ks in range(4):
        if ks < 3:
            rd(ks + 1)
        e(f"s_waitcnt lgkmcnt({4 if ks < 3 else 0})")
        o = 16 + 16 * (ks & 1)
        for nbi in range(2):
            for mbi in range(2):
                a = 64 + (nbi * 2 + mbi) * 16
                e(f"v_mfma_f32_32x32x16_bf16 v[{a}:{a+15}], v[{o+4*nbi}:{o+3+4*nbi}], v[{o+8+4*mbi}:{o+11+4*mbi}], v[{a}:{a+15}]")
    e("s_xor_b32 s40, s40, 32768")
    e("s_add_u32 s43, s43, 1")
    e(f"s_cmp_lt_u32 s43, {nchunks}")
    e(f"s_cbranch_scc1 L_{name}_loop")
    e("s_nop 15")
    e("s_nop 3")
    e("v_and_b32 v10, 31, v2")
    e("v_lshrrev_b32 v11, 5, v2")
    if epi == "q":
        for nbi in range(2):
            for mbi in range(2):
                for g in range(4):
                    a = 64 + (nbi * 2 + mbi) * 16 + 4 * g
                    e(f"v_cvt_pk_bf16_f32 v12, v{a}, v{a+1}")
                    e(f"v_cvt_pk_bf16_f32 v13, v{a+2}, v{a+3}")
                    e("s_lshl_b32 s45, s29, 6")
                    e("s_lshl_b32 s46, s28, 2")
                    e("s_add_u32 s45, s45, s46")
                    e(f"s_add_u32 s45, s45, {mbi}")
                    e("s_lshr_b32 s46, s32, 1")
                    e("s_lshl_b32 s46, s46, 1")
                    e("s_add_u32 s45, s45, s46")
                    e("s_lshl_b32 s45, s45, 3")
                    e("s_and_b32 s46, s32, 1")
                    e("s_lshl_b32 s46, s46, 2")
                    e("s_add_u32 s45, s45, s46")
                    e(f"s_add_u32 s45, s45, {2*nbi + (g >> 1)}")
                    e("s_lshl_b32 s45, s45, 10")
                    e(f"v_lshl_add_u32 v14, v10, 4, s45")
                    e("v_lshl_add_u32 v14, v11, 3, v14")
                    e(f"buffer_store_dwordx2 v[12:13], v14, s[24:27], 0 offen offset:{512*(g&1)}")
                    e("s_nop 1")
    elif epi == "part":
        e("s_lshl_b32 s45, s28, 7")
        e("s_lshr_b32 s46, s32, 1")
        e("s_lshl_b32 s46, s46, 6")
        e("s_add_u32 s45, s45, s46")
        e(f"s_mul_i32 s47, s30, {2048}")
        e("s_add_u32 s45, s45, s47")
        e("v_add_u32 v14, s45, v10")
        e(f"s_mov_b32 s47, {N*4}")
        e("v_mul_lo_u32 v14, v14, s47")
        e("s_lshl_b32 s45, s29, 7")
        e("s_and_b32 s46, s32, 1")
        e("s_lshl_b32 s46, s46, 6")
        e("s_add_u32 s45, s45, s46")
        e("s_lshl_b32 s45, s45, 2")
        e("v_add_u32 v14, s45, v14")
        e("v_lshl_add_u32 v14, v11, 4, v14")
        for nbi in range(2):
            for mbi in range(2):
                for g in range(4):
                    a = 64 + (nbi * 2 + mbi) * 16 + 4 * g
                    off = mbi * 32 * N * 4 + (32 * nbi + 8 * g) * 4
                    if off < 4096:
                        e(f"buffer_store_dwordx4 v[{a}:{a+3}], v14, s[24:27], 0 offen offset:{off}")
                    else:
                        e(f"s_mov_b32 s47, {off}")
                        e(f"buffer_store_dwordx4 v[{a}:{a+3}], v14, s[24:27], s47 offen")
    elif epi == "geglu":
        KSO = N // 16
        for mbi in range(2):
            for r in range(16):
                gr = 64 + mbi * 16 + r
                ur = 64 + 32 + mbi * 16 + r
                e(f"v_mul_f32 v12, v{gr}, v{gr}")
                e("v_mov_b32 v13, 0x3d372713")
                e(f"v_fma_f32 v12, v12, v13, 1.0")
                e(f"v_mul_f32 v12, v12, v{gr}")
                e("v_mul_f32 v12, 0xc0135761, v12")
                e("v_exp_f32 v12, v12")
                e("s_nop 0")
                e("v_add_f32 v12, 1.0, v12")
                e("v_rcp_f32 v12, v12")
                e("s_nop 0")
                e(f"v_mul_f32 v12, v12, v{gr}")
                e(f"v_mul_f32 v{gr}, v12, v{ur}")
            for g in range(4):
                a = 64 + mbi * 16 + 4 * g
                e(f"v_cvt_pk_bf16_f32 v12, v{a}, v{a+1}")
                e(f"v_cvt_pk_bf16_f32 v13, v{a+2}, v{a+3}")
                e("s_lshl_b32 s45, s28, 2")
                e("s_lshr_b32 s46, s32, 1")
                e("s_lshl_b32 s46, s46, 1")
                e("s_add_u32 s45, s45, s46")
                e(f"s_add_u32 s45, s45, {mbi}")
                e(f"s_mul_i32 s45, s45, {KSO}")
                e("s_lshl_b32 s46, s29, 2")
                e("s_add_u32 s45, s45, s46")
                e("s_and_b32 s46, s32, 1")
                e("s_lshl_b32 s46, s46, 1")
                e("s_add_u32 s45, s45, s46")
                e(f"s_add_u32 s45, s45, {g >> 1}")
                e("s_lshl_b32 s45, s45, 10")
                e("v_lshl_add_u32 v14, v10, 4, s45")
                e("v_lshl_add_u32 v14, v11, 3, v14")
                e(f"buffer_store_dwordx2 v[12:13], v14, s[24:27], 0 offen offset:{512*(g&1)}")
                e("s_nop 1")
    e("s_waitcnt vmcnt(0)")
    lab(f"L_{name}_done")
    kernel_end(name, 128)
    launch(name, nwg, 256, 65536)


def k_attn():
    name = "k_attn_kernel"
    kernel_begin(name)
    e("s_cmp_ge_u32 s2, 256")
    e(f"s_cbranch_scc1 L_{name}_done")
    e(f"s_load_dwordx2 s[8:9], s[0:1], {A_WS}")
    e("s_waitcnt lgkmcnt(0)")
    srd_ws(12, 8, KP, 4194304)
    srd_ws(16, 8, VP, 4194304)
    srd_ws(20, 8, QF, 2048 * 4096 * 2)
    srd_ws(24, 8, OF, 2048 * 4096 * 2)
    e("s_and_b32 s28, s2, 7")
    e("s_lshr_b32 s29, s2, 3")
    e("s_and_b32 s29, s29, 3")
    e("s_lshl_b32 s30, s28, 2")
    e("s_add_u32 s29, s29, s30")
    e("s_lshr_b32 s30, s2, 5")
    e("v_lshrrev_b32 v1, 6, v0")
    e("v_and_b32 v2, 63, v0")
    e("s_nop 0")
    e("v_readfirstlane_b32 s32, v1")
    e("v_lshlrev_b32 v3, 4, v2")
    e("s_lshl_b32 s33, s29, 6")
    e("s_lshl_b32 s34, s30, 3")
    e("s_add_u32 s33, s33, s34")
    e("s_add_u32 s33, s33, s32")
    e("s_lshl_b32 s33, s33, 13")
    e("v_add_u32 v4, s33, v3")
    for ks in range(8):
        e(f"buffer_load_dwordx4 v[{32+4*ks}:{35+4*ks}], v4, s[20:23], 0 offen offset:{1024*ks%4096}" if ks < 4 else
          f"buffer_load_dwordx4 v[{32+4*ks}:{35+4*ks}], v4, s[20:23], 0 offen offset:{1024*(ks-4)}")
        if ks == 3:
            e("v_add_u32 v4, 4096, v4")
    e("s_lshl_b32 s34, s28, 19")
    e("s_lshl_b32 s35, s32, 11")
    e("s_add_u32 s34, s34, s35")
    e("v_add_u32 v5, s34, v3")

    def dma(soff):
        e("s_add_u32 m0, s40, s35")
        e("s_nop 0")
        e(f"buffer_load_dwordx4 v5, s[12:15], s{soff} offen lds")
        e(f"buffer_load_dwordx4 v5, s[12:15], s{soff} offen offset:1024 lds")
        e("s_add_u32 s41, s40, 16384")
        e("s_add_u32 m0, s41, s35")
        e("s_nop 0")
        e(f"buffer_load_dwordx4 v5, s[16:19], s{soff} offen lds")
        e(f"buffer_load_dwordx4 v5, s[16:19], s{soff} offen offset:1024 lds")

    for i in range(64):
        e(f"v_mov_b32 v{64+i}, 0")
    e("v_mov_b32 v6, 0xff800000")
    e("v_mov_b32 v7, 0")
    e("s_mov_b32 s44, 0x3e0553f5")
    e("s_mov_b32 s40, 0")
    e("s_mov_b32 s42, 0")
    dma(42)
    e("s_mov_b32 s43, 0")
    lab(f"L_{name}_loop")
    e("s_waitcnt vmcnt(0)")
    e("s_barrier")
    e("s_add_u32 s45, s43, 1")
    e("s_cmp_lt_u32 s45, 32")
    e(f"s_cbranch_scc0 L_{name}_nodma")
    e("s_xor_b32 s40, s40, 32768")
    e("s_add_u32 s42, s42, 16384")
    dma(42)
    e("s_xor_b32 s40, s40, 32768")
    lab(f"L_{name}_nodma")
    e("v_add_u32 v8, s40, v3")
    for kb in range(2):
        for ks in range(8):
            f = 176 + 4 * ks
            e(f"ds_read_b128 v[{f}:{f+3}], v8 offset:{(kb*8+ks)*1024}")
        for ks in range(8):
            f = 176 + 4 * ks
            e(f"s_waitcnt lgkmcnt({7-ks})")
            s = 128 + 16 * kb
            c = f"v[{s}:{s+15}]" if ks else "0"
            e(f"v_mfma_f32_32x32x16_bf16 v[{s}:{s+15}], v[{f}:{f+3}], v[{32+4*ks}:{35+4*ks}], {c}")
    e("s_nop 15")
    e("v_max_f32 v9, v128, v129")
    for r in range(130, 160, 2):
        e(f"v_max3_f32 v9, v9, v{r}, v{r+1}")
    e("v_mov_b32 v10, v9")
    e("s_nop 1")
    e("v_permlane32_swap_b32 v9, v10")
    e("v_max_f32 v9, v9, v10")
    e("v_max_f32 v9, v9, v6")
    e("v_sub_f32 v10, v9, v6")
    e("v_mul_f32 v10, s44, v10")
    e("v_mov_b32 v11, 0x41000000")
    e("v_cmp_gt_f32 vcc, v10, v11")
    e(f"s_cbranch_vccz L_{name}_norescale")
    e("v_sub_f32 v10, v6, v9")
    e("v_mul_f32 v10, s44, v10")
    e("v_exp_f32 v10, v10")
    e("v_mov_b32 v6, v9")
    e("v_mul_f32 v7, v7, v10")
    for i in range(64):
        e(f"v_mul_f32 v{64+i}, v{64+i}, v10")
    lab(f"L_{name}_norescale")
    e("v_mul_f32 v11, s44, v6")
    for r in range(32):
        e(f"v_fma_f32 v{128+r}, v{128+r}, s44, -v11")
        e(f"v_exp_f32 v{128+r}, v{128+r}")
    e("s_nop 0")
    for r in range(32):
        e(f"v_add_f32 v7, v7, v{128+r}")
    for r in range(16):
        e(f"v_cvt_pk_bf16_f32 v{160+r}, v{128+2*r}, v{129+2*r}")
    for jj in range(4):
        for db in range(4):
            f = 176 + 4 * db
            e(f"ds_read_b128 v[{f}:{f+3}], v8 offset:{16384 + (jj*4+db)*1024}")
        for db in range(4):
            f = 176 + 4 * db
            e(f"s_waitcnt lgkmcnt({3-db})")
            a = 64 + 16 * db
            e(f"v_mfma_f32_32x32x16_bf16 v[{a}:{a+15}], v[{f}:{f+3}], v[{160+4*jj}:{163+4*jj}], v[{a}:{a+15}]")
    e("s_xor_b32 s40, s40, 32768")
    e("s_add_u32 s43, s43, 1")
    e("s_cmp_lt_u32 s43, 32")
    e(f"s_cbranch_scc1 L_{name}_loop")
    e("s_nop 15")
    e("v_mov_b32 v10, v7")
    e("s_nop 1")
    e("v_permlane32_swap_b32 v7, v10")
    e("v_add_f32 v7, v7, v10")
    e("v_rcp_f32 v7, v7")
    e("s_nop 0")
    e("v_and_b32 v10, 31, v2")
    e("v_lshrrev_b32 v11, 5, v2")
    e("s_lshl_b32 s45, s30, 3")
    e("s_add_u32 s45, s45, s32")
    e("s_lshl_b32 s45, s45, 8")
    e("s_lshl_b32 s46, s29, 3")
    e("s_add_u32 s45, s45, s46")
    e("s_lshl_b32 s45, s45, 10")
    e("v_lshl_add_u32 v14, v10, 4, s45")
    e("v_lshl_add_u32 v14, v11, 3, v14")
    for db in range(4):
        for g in range(4):
            a = 64 + 16 * db + 4 * g
            for k in range(4):
                e(f"v_mul_f32 v{a+k}, v{a+k}, v7")
            e(f"v_cvt_pk_bf16_f32 v12, v{a}, v{a+1}")
            e(f"v_cvt_pk_bf16_f32 v13, v{a+2}, v{a+3}")
            off = (2 * db + (g >> 1)) * 1024 + 512 * (g & 1)
            if off < 4096:
                e(f"buffer_store_dwordx2 v[12:13], v14, s[24:27], 0 offen offset:{off}")
            else:
                e(f"s_mov_b32 s47, 4096")
                e(f"buffer_store_dwordx2 v[12:13], v14, s[24:27], s47 offen offset:{off-4096}")
            e("s_nop 1")
    e("s_waitcnt vmcnt(0)")
    lab(f"L_{name}_done")
    kernel_end(name, 208)
    launch(name, 256, 512, 65536)


def k_final():
    name = "k_final_kernel"
    kernel_begin(name)
    e("s_cmp_ge_u32 s2, 512")
    e(f"s_cbranch_scc1 L_{name}_done")
    e(f"s_load_dwordx2 s[4:5], s[0:1], {A_OUT}")
    e(f"s_load_dwordx2 s[8:9], s[0:1], {A_WS}")
    e("s_waitcnt lgkmcnt(0)")
    srd(12, 4, 2048 * 512 * 2)
    srd_ws(16, 8, MOD, 3072 * 4)
    srd_ws(24, 8, PART2, 4 * 2048 * 512 * 4)
    srd_ws(28, 8, X2, 2048 * 512 * 4)
    e("v_lshrrev_b32 v1, 6, v0")
    e("s_lshl_b32 s3, s2, 2")
    e("v_add_u32 v1, s3, v1")
    e("v_and_b32 v2, 63, v0")
    e("v_lshlrev_b32 v4, 5, v2")
    e(f"v_add_u32 v5, {5*512*4}, v4")
    e("buffer_load_dwordx4 v[28:31], v5, s[16:19], 0 offen")
    e("buffer_load_dwordx4 v[32:35], v5, s[16:19], 0 offen offset:16")
    e("v_lshlrev_b32 v6, 11, v1")
    e("v_add_u32 v6, v6, v4")
    e("buffer_load_dwordx4 v[40:43], v6, s[28:31], 0 offen")
    e("buffer_load_dwordx4 v[44:47], v6, s[28:31], 0 offen offset:16")
    for p in range(4):
        e(f"s_mov_b32 s33, {p * 2048 * 512 * 4}")
        e(f"buffer_load_dwordx4 v[{48+8*p}:{51+8*p}], v6, s[24:27], s33 offen")
        e(f"buffer_load_dwordx4 v[{52+8*p}:{55+8*p}], v6, s[24:27], s33 offen offset:16")
    e("s_waitcnt vmcnt(0)")
    for i in range(8):
        e(f"v_add_f32 v{48+i}, v{48+i}, v{56+i}")
        e(f"v_add_f32 v{64+i}, v{64+i}, v{72+i}")
        e(f"v_add_f32 v{48+i}, v{48+i}, v{64+i}")
        e(f"v_fmac_f32 v{40+i}, v{48+i}, v{28+i}")
    for i in range(4):
        e(f"v_cvt_pk_bf16_f32 v{8+i}, v{40+2*i}, v{41+2*i}")
    e("v_lshlrev_b32 v3, 10, v1")
    e("v_lshl_add_u32 v3, v2, 4, v3")
    e("buffer_store_dwordx4 v[8:11], v3, s[12:15], 0 offen")
    e("s_waitcnt vmcnt(0)")
    lab(f"L_{name}_done")
    kernel_end(name, 96)
    launch(name, 512, 256)


def main():
    parts = [("B_mod", 96), ("B_k_prepwq_kernel", 1024), ("B_k_prepk_kernel", 1024), ("B_k_prepv_kernel", 1024),
             ("B_k_prepwo_kernel", 1024), ("B_k_prepwg_kernel", 448), ("B_k_prepwu_kernel", 448), ("B_k_prepwd_kernel", 448)]
    kernel_begin("k_prep_kernel")
    for lb, n in parts:
        e(f"s_cmp_lt_u32 s2, {n}")
        e(f"s_cbranch_scc1 {lb}")
        e(f"s_sub_u32 s2, s2, {n}")
    e("s_endpgm")
    k_mod()
    k_prep_k()
    k_prep_v()
    k_prep_w("k_prepwq_kernel", A_WQ, 512, 4096, WQP)
    k_prep_w("k_prepwo_kernel", A_WO, 4096, 512, WOP)
    k_prep_w("k_prepwg_kernel", A_WG, 512, 1792, WGP)
    k_prep_w("k_prepwu_kernel", A_WU, 512, 1792, WUP)
    k_prep_w("k_prepwd_kernel", A_WD, 1792, 512, WDP)
    kernel_end("k_prep_kernel", 64)
    launch("k_prep_kernel", sum(n for _, n in parts), 256, 4096)
    k_ln("k_ln1_kernel", 1)
    k_gemm("k_qproj_kernel", 512, 4096, WQP, H1, "q", dst=QF)
    k_attn()
    k_gemm("k_oproj_kernel", 4096, 512, WOP, OF, "part", splitk=4, dst=PART)
    k_ln("k_ln2_kernel", 2)
    k_gemm("k_ffn1_kernel", 512, 1792, WGP, H2, "geglu", wsrc2=WUP, dst=HM)
    k_gemm("k_ffn2_kernel", 1792, 512, WDP, HM, "part", splitk=4, dst=PART2)
    k_final()
    hdr = ["; adaLN + GQA attention + GEGLU block, multi-kernel launch list (generated by gen/gen.py)"] + launches
    txt = "\n".join(hdr) + "\n.amdgcn_target \"amdgcn-amd-amdhsa--gfx950\"\n.text\n" + "\n".join(lines) + \
        "\n.section .rodata,\"a\"\n.p2align 6\n" + "\n.p2align 6\n".join(descs) + "\n"
    open(OUT, "w").write(txt)


main()
```

```python
import sys

OUT = "adaLN_cond__gqa_block_cached__glu_gated_geglu__prompt.s"

MOD = 0x0
KP = 0x00100000
VP = 0x00500000
WQP = 0x00900000
WOP = 0x00D00000
WGP = 0x01100000
WUP = 0x01300000
WDP = 0x01500000
H1 = 0x01700000
QF = 0x01900000
OF = 0x02900000
PART = 0x03900000
X2 = 0x04900000
H2 = 0x04D00000
HM = 0x04F00000
PART2 = 0x05700000
WS_SIZE = 268435456

A_X, A_K, A_V, A_WQ, A_WO, A_BX, A_WG, A_WU, A_WD, A_C, A_WMOD, A_OUT, A_DBG, A_WS = [8 * i for i in range(14)]

lines = []
launches = []


def e(s):
    lines.append("    " + s)


def lab(s):
    lines.append(s + ":")


def srd(dst, base, size):
    e(f"s_mov_b32 s{dst}, s{base}")
    e(f"s_and_b32 s{dst+1}, s{base+1}, 0xffff")
    e(f"s_mov_b32 s{dst+2}, {size}")
    e(f"s_mov_b32 s{dst+3}, 0x00020000")


def srd_ws(dst, wsreg, off, size):
    e(f"s_add_u32 s{dst}, s{wsreg}, {off}")
    e(f"s_addc_u32 s{dst+1}, s{wsreg+1}, 0")
    e(f"s_and_b32 s{dst+1}, s{dst+1}, 0xffff")
    e(f"s_mov_b32 s{dst+2}, {size}")
    e(f"s_mov_b32 s{dst+3}, 0x00020000")


def kernel_begin(name):
    lines.append(f".globl {name}")
    lines.append(".p2align 8")
    lines.append(f".type {name},@function")
    lab(name)


descs = []


def kernel_end(name, vgprs, sgprs=96, agprs=0):
    e("s_endpgm")
    acc = (vgprs + 3) // 4 * 4
    nfv = acc + agprs if agprs else vgprs
    descs.append(f""".amdhsa_kernel {name}
  .amdhsa_next_free_vgpr {nfv}
  .amdhsa_next_free_sgpr {sgprs}
  .amdhsa_accum_offset {acc}
  .amdhsa_group_segment_fixed_size 0
  .amdhsa_kernarg_size 112
  .amdhsa_user_sgpr_count 2
  .amdhsa_user_sgpr_kernarg_segment_ptr 1
  .amdhsa_system_sgpr_workgroup_id_x 1
.end_amdhsa_kernel""")


def launch(name, grid, block, lds=0):
    launches.append(f"; @launch kernel={name} grid=({grid},1,1) block=({block},1,1) lds={lds}")


def k_mod():
    lab("B_mod")
    e(f"s_load_dwordx2 s[4:5], s[0:1], {A_C}")
    e(f"s_load_dwordx2 s[6:7], s[0:1], {A_WMOD}")
    e(f"s_load_dwordx2 s[8:9], s[0:1], {A_WS}")
    e("s_waitcnt lgkmcnt(0)")
    srd(12, 4, 1024)
    srd(16, 6, 512 * 3072 * 2)
    srd_ws(20, 8, MOD, 3072 * 4)
    e("v_lshlrev_b32 v1, 2, v0")
    e("buffer_load_dword v2, v1, s[12:15], 0 offen")
    e("s_waitcnt vmcnt(0)")
    e("v_lshlrev_b32 v3, 16, v2")
    e("v_and_b32 v4, 0xffff0000, v2")
    for r in (3, 4):
        e(f"v_mul_f32 v5, 0xbfb8aa3b, v{r}")
        e("v_exp_f32 v5, v5")
        e("s_nop 0")
        e("v_add_f32 v5, 1.0, v5")
        e("v_rcp_f32 v5, v5")
        e("s_nop 0")
        e(f"v_mul_f32 v{r}, v{r}, v5")
    e("v_cvt_pk_bf16_f32 v5, v3, v4")
    e("v_lshlrev_b32 v14, 16, v5")
    e("v_and_b32 v15, 0xffff0000, v5")
    e("v_lshlrev_b32 v6, 3, v0")
    e("ds_write_b64 v6, v[14:15]")
    e("s_waitcnt lgkmcnt(0)")
    e("s_barrier")
    e("v_lshrrev_b32 v7, 4, v0")
    e("v_and_b32 v8, 15, v0")
    e("v_lshlrev_b32 v9, 7, v7")
    e("s_lshl_b32 s3, s2, 6")
    e("v_lshlrev_b32 v10, 2, v8")
    e("v_add_u32 v10, s3, v10")
    e("v_mov_b32 v11, 6144")
    e("v_lshlrev_b32 v12, 5, v7")
    e("v_mul_lo_u32 v12, v12, v11")
    e("v_add_u32 v10, v10, v12")
    e("v_mov_b32 v20, 0")
    e("v_mov_b32 v21, 0")
    for half in range(2):
        for u in range(16):
            e(f"buffer_load_dword v{48+u}, v10, s[16:19], 0 offen")
            e("v_add_u32 v10, 6144, v10")
        for u in range(4):
            e(f"ds_read_b128 v[{24+4*u}:{27+4*u}], v9 offset:{half*64+16*u}")
        e("s_waitcnt vmcnt(0) lgkmcnt(0)")
        for u in range(16):
            e(f"v_lshlrev_b32 v40, 16, v{48+u}")
            e(f"v_and_b32 v41, 0xffff0000, v{48+u}")
            e(f"v_fmac_f32 v20, v40, v{24+u}")
            e(f"v_fmac_f32 v21, v41, v{24+u}")
    e("v_lshlrev_b32 v9, 3, v0")
    e("v_add_u32 v9, 2048, v9")
    e("ds_write_b64 v9, v[20:21]")
    e("s_waitcnt lgkmcnt(0)")
    e("s_barrier")
    e("v_lshlrev_b32 v9, 3, v8")
    e("v_add_u32 v9, 2048, v9")
    for g in range(16):
        e(f"ds_read_b64 v[{24+2*g}:{25+2*g}], v9 offset:{128*g}")
    e("s_waitcnt lgkmcnt(0)")
    for g in range(1, 16):
        e(f"v_add_f32 v24, v24, v{24+2*g}")
        e(f"v_add_f32 v25, v25, v{25+2*g}")
    e("v_cvt_pk_bf16_f32 v26, v24, v25")
    e("v_lshlrev_b32 v24, 16, v26")
    e("v_and_b32 v25, 0xffff0000, v26")
    e("s_lshl_b32 s3, s2, 7")
    e("v_lshlrev_b32 v9, 3, v8")
    e("v_add_u32 v9, s3, v9")
    e("v_cmp_gt_u32 vcc, 16, v0")
    e("s_and_saveexec_b64 s[24:25], vcc")
    e("buffer_store_dwordx2 v[24:25], v9, s[20:23], 0 offen")
    e("s_waitcnt vmcnt(0)")
    e("s_endpgm")


def k_prep_w(name, argoff, K, N, dst):
    KS = K // 16
    nfr = (N // 32) * KS
    lab(f"B_{name}")
    e(f"s_load_dwordx2 s[4:5], s[0:1], {argoff}")
    e(f"s_load_dwordx2 s[8:9], s[0:1], {A_WS}")
    e("s_waitcnt lgkmcnt(0)")
    srd(12, 4, K * N * 2)
    srd_ws(16, 8, dst, K * N * 2)
    e("v_lshrrev_b32 v1, 6, v0")
    e("s_lshl_b32 s3, s2, 2")
    e("v_add_u32 v1, s3, v1")
    e("v_and_b32 v2, 63, v0")
    magic = (2**32 + KS - 1) // KS
    e(f"s_mov_b32 s20, {magic}")
    e("v_mul_hi_u32 v3, v1, s20")
    e(f"s_mov_b32 s21, {KS}")
    e("v_mul_lo_u32 v4, v3, s21")
    e("v_sub_u32 v4, v1, v4")
    e("v_lshrrev_b32 v5, 5, v2")
    e("v_lshlrev_b32 v5, 3, v5")
    e("v_lshl_add_u32 v5, v4, 4, v5")
    e(f"s_mov_b32 s21, {N * 2}")
    e("v_mul_lo_u32 v5, v5, s21")
    e("v_and_b32 v6, 31, v2")
    e("v_lshl_add_u32 v6, v3, 5, v6")
    e("v_lshl_add_u32 v5, v6, 1, v5")
    for i in range(8):
        e(f"buffer_load_ushort v{16 + i}, v5, s[12:15], 0 offen")
        e("v_add_u32 v5, s21, v5")
    e("v_lshlrev_b32 v7, 10, v1")
    e("v_lshl_add_u32 v7, v2, 4, v7")
    e("s_waitcnt vmcnt(0)")
    for i in range(4):
        e(f"v_lshl_or_b32 v{8+i}, v{17+2*i}, 16, v{16+2*i}")
    e("buffer_store_dwordx4 v[8:11], v7, s[16:19], 0 offen")
    e("s_waitcnt vmcnt(0)")
    e("s_endpgm")


def k_prep_k():
    name = "k_prepk_kernel"
    lab(f"B_{name}")
    e(f"s_load_dwordx2 s[4:5], s[0:1], {A_K}")
    e(f"s_load_dwordx2 s[8:9], s[0:1], {A_WS}")
    e("s_waitcnt lgkmcnt(0)")
    srd(12, 4, 4194304)
    srd_ws(16, 8, KP, 4194304)
    e("v_lshrrev_b32 v1, 6, v0")
    e("s_lshl_b32 s3, s2, 2")
    e("v_add_u32 v1, s3, v1")
    e("v_and_b32 v2, 63, v0")
    e("v_lshrrev_b32 v3, 3, v1")
    e("v_and_b32 v4, 7, v1")
    e("v_and_b32 v5, 31, v2")
    e("v_lshl_add_u32 v5, v3, 5, v5")
    e("v_lshlrev_b32 v5, 8, v5")
    e("v_lshl_add_u32 v5, v4, 5, v5")
    e("v_lshrrev_b32 v6, 5, v2")
    e("v_lshl_add_u32 v5, v6, 4, v5")
    e("buffer_load_dwordx4 v[8:11], v5, s[12:15], 0 offen")
    e("v_lshlrev_b32 v7, 10, v1")
    e("v_lshl_add_u32 v7, v2, 4, v7")
    e("s_waitcnt vmcnt(0)")
    e("buffer_store_dwordx4 v[8:11], v7, s[16:19], 0 offen")
    e("s_waitcnt vmcnt(0)")
    e("s_endpgm")


def k_prep_v():
    name = "k_prepv_kernel"
    lab(f"B_{name}")
    e(f"s_load_dwordx2 s[4:5], s[0:1], {A_V}")
    e(f"s_load_dwordx2 s[8:9], s[0:1], {A_WS}")
    e("s_waitcnt lgkmcnt(0)")
    srd(12, 4, 4194304)
    srd_ws(16, 8, VP, 4194304)
    e("v_lshrrev_b32 v1, 6, v0")
    e("s_lshl_b32 s3, s2, 2")
    e("v_add_u32 v1, s3, v1")
    e("v_and_b32 v2, 63, v0")
    e("v_lshrrev_b32 v3, 2, v1")
    e("v_and_b32 v4, 3, v1")
    e("v_lshrrev_b32 v6, 5, v2")
    e("v_lshlrev_b32 v6, 2, v6")
    e("v_lshl_add_u32 v5, v3, 4, v6")
    e("v_lshlrev_b32 v5, 8, v5")
    e("v_and_b32 v6, 31, v2")
    e("v_lshl_add_u32 v6, v4, 5, v6")
    e("v_lshl_add_u32 v5, v6, 1, v5")
    for i in range(8):
        off = (8 * (i >> 2) + (i & 3)) * 256
        e(f"buffer_load_ushort v{16 + i}, v5, s[12:15], 0 offen offset:{off}")
    e("v_lshlrev_b32 v7, 10, v1")
    e("v_lshl_add_u32 v7, v2, 4, v7")
    e("s_waitcnt vmcnt(0)")
    for i in range(4):
        e(f"v_lshl_or_b32 v{8+i}, v{17+2*i}, 16, v{16+2*i}")
    e("buffer_store_dwordx4 v[8:11], v7, s[16:19], 0 offen")
    e("s_waitcnt vmcnt(0)")
    e("s_endpgm")


def k_ln(name, mode):
    kernel_begin(name)
    e("s_cmp_ge_u32 s2, 512")
    e(f"s_cbranch_scc1 L_{name}_done")
    e(f"s_load_dwordx2 s[4:5], s[0:1], {A_X}")
    e(f"s_load_dwordx2 s[8:9], s[0:1], {A_WS}")
    e("s_waitcnt lgkmcnt(0)")
    srd(12, 4, 2048 * 512 * 2)
    srd_ws(16, 8, MOD, 3072 * 4)
    srd_ws(20, 8, H1 if mode == 1 else H2, 2048 * 512 * 2)
    if mode == 2:
        srd_ws(24, 8, PART, 4 * 2048 * 512 * 4)
        srd_ws(28, 8, X2, 2048 * 512 * 4)
    e("v_lshrrev_b32 v1, 6, v0")
    e("s_lshl_b32 s3, s2, 2")
    e("v_add_u32 v1, s3, v1")
    e("v_and_b32 v2, 63, v0")
    e("v_lshlrev_b32 v3, 10, v1")
    e("v_lshl_add_u32 v3, v2, 4, v3")
    e("buffer_load_dwordx4 v[8:11], v3, s[12:15], 0 offen")
    e("v_lshlrev_b32 v4, 5, v2")
    sh, sc, ga = (0, 512, 1024) if mode == 1 else (3 * 512, 4 * 512, 2 * 512)
    e(f"v_add_u32 v5, {sh*4}, v4")
    e("buffer_load_dwordx4 v[12:15], v5, s[16:19], 0 offen")
    e("buffer_load_dwordx4 v[16:19], v5, s[16:19], 0 offen offset:16")
    e(f"v_add_u32 v5, {sc*4}, v4")
    e("buffer_load_dwordx4 v[20:23], v5, s[16:19], 0 offen")
    e("buffer_load_dwordx4 v[24:27], v5, s[16:19], 0 offen offset:16")
    if mode == 2:
        e(f"v_add_u32 v5, {ga*4}, v4")
        e("buffer_load_dwordx4 v[28:31], v5, s[16:19], 0 offen")
        e("buffer_load_dwordx4 v[32:35], v5, s[16:19], 0 offen offset:16")
        e("v_lshlrev_b32 v6, 11, v1")
        e("v_add_u32 v6, v6, v4")
        for p in range(4):
            e(f"s_mov_b32 s33, {p * 2048 * 512 * 4}")
            e(f"buffer_load_dwordx4 v[{48+8*p}:{51+8*p}], v6, s[24:27], s33 offen")
            e(f"buffer_load_dwordx4 v[{52+8*p}:{55+8*p}], v6, s[24:27], s33 offen offset:16")
    e("s_waitcnt vmcnt(0)")
    for i in range(4):
        e(f"v_lshlrev_b32 v{40+2*i}, 16, v{8+i}")
        e(f"v_and_b32 v{41+2*i}, 0xffff0000, v{8+i}")
    if mode == 2:
        for i in range(8):
            e(f"v_add_f32 v{48+i}, v{48+i}, v{56+i}")
            e(f"v_add_f32 v{64+i}, v{64+i}, v{72+i}")
            e(f"v_add_f32 v{48+i}, v{48+i}, v{64+i}")
            e(f"v_fmac_f32 v{40+i}, v{48+i}, v{28+i}")
        for i in range(4):
            e(f"v_cvt_pk_bf16_f32 v36, v{40+2*i}, v{41+2*i}")
            e(f"v_lshlrev_b32 v{40+2*i}, 16, v36")
            e(f"v_and_b32 v{41+2*i}, 0xffff0000, v36")
        e("buffer_store_dwordx4 v[40:43], v6, s[28:31], 0 offen")
        e("buffer_store_dwordx4 v[44:47], v6, s[28:31], 0 offen offset:16")

    def wave_sum(reg):
        for off in (0x041F, 0x081F, 0x101F, 0x201F, 0x401F):
            e(f"ds_swizzle_b32 v37, v{reg} offset:{off}")
            e("s_waitcnt lgkmcnt(0)")
            e(f"v_add_f32 v{reg}, v{reg}, v37")
        e(f"v_mov_b32 v37, v{reg}")
        e("s_nop 1")
        e(f"v_permlane32_swap_b32 v{reg}, v37")
        e(f"v_add_f32 v{reg}, v{reg}, v37")

    e("v_add_f32 v36, v40, v41")
    for i in range(2, 8):
        e(f"v_add_f32 v36, v36, v{40+i}")
    wave_sum(36)
    e("v_mul_f32 v36, 0x3b000000, v36")
    for i in range(8):
        e(f"v_sub_f32 v{40+i}, v{40+i}, v36")
    e("v_mul_f32 v38, v40, v40")
    for i in range(1, 8):
        e(f"v_fmac_f32 v38, v{40+i}, v{40+i}")
    wave_sum(38)
    e("v_mov_b32 v39, 0x3727c5ac")
    e("v_fmac_f32 v39, 0x3b000000, v38")
    e("v_rsq_f32 v39, v39")
    e("s_nop 0")
    for i in range(8):
        e(f"v_mul_f32 v{40+i}, v{40+i}, v39")
        e(f"v_add_f32 v{20+i}, 1.0, v{20+i}")
        e(f"v_fma_f32 v{40+i}, v{40+i}, v{20+i}, v{12+i}")
    for i in range(4):
        e(f"v_cvt_pk_bf16_f32 v{8+i}, v{40+2*i}, v{41+2*i}")
    e("v_lshrrev_b32 v3, 5, v1")
    e("v_lshlrev_b32 v3, 5, v3")
    e("v_lshrrev_b32 v4, 1, v2")
    e("v_add_u32 v3, v3, v4")
    e("v_lshlrev_b32 v3, 6, v3")
    e("v_and_b32 v4, 31, v1")
    e("v_add_u32 v3, v3, v4")
    e("v_and_b32 v4, 1, v2")
    e("v_lshl_add_u32 v3, v4, 5, v3")
    e("v_lshlrev_b32 v3, 4, v3")
    e("buffer_store_dwordx4 v[8:11], v3, s[20:23], 0 offen")
    e("s_waitcnt vmcnt(0)")
    lab(f"L_{name}_done")
    kernel_end(name, 96)
    launch(name, 512, 256)


def k_gemm(name, K, N, wsrc, asrc, epi, splitk=1, wsrc2=None, dst=None):
    KS = K // 16
    nchunks = K // 64 // splitk
    if epi == "geglu":
        ntiles = N // 64
    else:
        ntiles = N // 128
    mtiles = 16
    nwg = ntiles * mtiles * splitk
    kernel_begin(name)
    e(f"s_cmp_ge_u32 s2, {nwg}")
    e(f"s_cbranch_scc1 L_{name}_done")
    e(f"s_load_dwordx2 s[8:9], s[0:1], {A_WS}")
    e("s_waitcnt lgkmcnt(0)")
    srd_ws(12, 8, wsrc, K * N * 2)
    if wsrc2 is not None:
        srd_ws(16, 8, wsrc2, K * N * 2)
    srd_ws(20, 8, asrc, 2048 * K * 2)
    if epi == "q":
        srd_ws(24, 8, dst, 2048 * 4096 * 2)
    elif epi == "part":
        srd_ws(24, 8, dst, splitk * 2048 * N * 4)
    elif epi == "geglu":
        srd_ws(24, 8, dst, 2048 * N * 2)
    e("s_and_b32 s28, s2, 15")
    e("s_lshr_b32 s29, s2, 4")
    magic = (2**32 + ntiles - 1) // ntiles
    e(f"s_mul_hi_u32 s30, s29, {magic}")
    e(f"s_mul_i32 s31, s30, {ntiles}")
    e("s_sub_u32 s29, s29, s31")
    e("v_lshrrev_b32 v1, 6, v0")
    e("v_and_b32 v2, 63, v0")
    e("s_nop 0")
    e("v_readfirstlane_b32 s32, v1")
    if epi == "geglu":
        e("s_lshr_b32 s33, s32, 1")
        e("s_lshl_b32 s34, s29, 1")
        e("s_add_u32 s33, s33, s34")
    else:
        e("s_lshl_b32 s33, s29, 2")
        e("s_add_u32 s33, s33, s32")
    e(f"s_mul_i32 s33, s33, {KS * 1024}")
    e(f"s_mul_i32 s34, s30, {nchunks * 4096}")
    e("s_add_u32 s33, s33, s34")
    e("s_lshl_b32 s35, s28, 2")
    e("s_add_u32 s35, s35, s32")
    e(f"s_mul_i32 s35, s35, {KS * 1024}")
    e("s_add_u32 s35, s35, s34")
    e("v_lshlrev_b32 v3, 4, v2")
    e("v_add_u32 v4, s33, v3")
    e("v_add_u32 v5, s35, v3")
    e("s_lshl_b32 s36, s32, 12")
    if epi == "geglu":
        e("s_and_b32 s37, s32, 1")

    def issue_dma(stage_sreg_expr, soff):
        e("s_add_u32 m0, s40, s36")
        e("s_nop 0")
        if epi == "geglu":
            e("s_cmp_eq_u32 s37, 0")
            e(f"s_cbranch_scc0 {next_lbl('up')}")
            for i in range(4):
                e(f"buffer_load_dwordx4 v4, s[12:15], s{soff} offen offset:{1024*i} lds")
            e(f"s_branch {next_lbl('join', keep=True)}")
            lab(cur_lbl('up'))
            for i in range(4):
                e(f"buffer_load_dwordx4 v4, s[16:19], s{soff} offen offset:{1024*i} lds")
            lab(cur_lbl('join'))
        else:
            for i in range(4):
                e(f"buffer_load_dwordx4 v4, s[12:15], s{soff} offen offset:{1024*i} lds")
        e("s_add_u32 s41, s40, 16384")
        e("s_add_u32 m0, s41, s36")
        e("s_nop 0")
        for i in range(4):
            e(f"buffer_load_dwordx4 v5, s[20:23], s{soff} offen offset:{1024*i} lds")

    cnt = {}

    def next_lbl(t, keep=False):
        if not keep:
            cnt[t] = cnt.get(t, 0) + 1
        else:
            cnt[t] = cnt.get('up', 0)
        return f"L_{name}_{t}{cnt[t]}"

    def cur_lbl(t):
        return f"L_{name}_{t}{cnt[t]}"

    for i in range(64):
        e(f"v_mov_b32 v{64+i}, 0")
    e("v_and_b32 v6, 1, v1")
    e("v_lshlrev_b32 v6, 13, v6")
    e("v_add_u32 v6, v6, v3")
    e("v_lshrrev_b32 v7, 1, v1")
    e("v_lshlrev_b32 v7, 13, v7")
    e("v_add_u32 v7, v7, v3")
    e("v_add_u32 v7, 16384, v7")
    e("s_mov_b32 s40, 0")
    e("s_mov_b32 s42, 0")
    issue_dma(None, 42)
    e("s_mov_b32 s43, 0")
    lab(f"L_{name}_loop")
    e("s_waitcnt vmcnt(0)")
    e("s_barrier")
    e("s_add_u32 s44, s43, 1")
    e(f"s_cmp_lt_u32 s44, {nchunks}")
    e(f"s_cbranch_scc0 L_{name}_nodma")
    e("s_xor_b32 s40, s40, 32768")
    e("s_add_u32 s42, s42, 4096")
    issue_dma(None, 42)
    e("s_xor_b32 s40, s40, 32768")
    lab(f"L_{name}_nodma")
    e("v_add_u32 v8, s40, v6")
    e("v_add_u32 v9, s40, v7")
    def rd(ks):
        o = 16 + 16 * (ks & 1)
        e(f"ds_read_b128 v[{o}:{o+3}], v8 offset:{ks*1024}")
        e(f"ds_read_b128 v[{o+4}:{o+7}], v8 offset:{4096+ks*1024}")
        e(f"ds_read_b128 v[{o+8}:{o+11}], v9 offset:{ks*1024}")
        e(f"ds_read_b128 v[{o+12}:{o+15}], v9 offset:{4096+ks*1024}")
    rd(0)
    for ks in range(4):
        if ks < 3:
            rd(ks + 1)
        e(f"s_waitcnt lgkmcnt({4 if ks < 3 else 0})")
        o = 16 + 16 * (ks & 1)
        for nbi in range(2):
            for mbi in range(2):
                a = 64 + (nbi * 2 + mbi) * 16
                e(f"v_mfma_f32_32x32x16_bf16 v[{a}:{a+15}], v[{o+4*nbi}:{o+3+4*nbi}], v[{o+8+4*mbi}:{o+11+4*mbi}], v[{a}:{a+15}]")
    e("s_xor_b32 s40, s40, 32768")
    e("s_add_u32 s43, s43, 1")
    e(f"s_cmp_lt_u32 s43, {nchunks}")
    e(f"s_cbranch_scc1 L_{name}_loop")
    e("s_nop 15")
    e("s_nop 3")
    e("v_and_b32 v10, 31, v2")
    e("v_lshrrev_b32 v11, 5, v2")
    if epi == "q":
        for nbi in range(2):
            for mbi in range(2):
                for g in range(4):
                    a = 64 + (nbi * 2 + mbi) * 16 + 4 * g
                    e(f"v_cvt_pk_bf16_f32 v12, v{a}, v{a+1}")
                    e(f"v_cvt_pk_bf16_f32 v13, v{a+2}, v{a+3}")
                    e("s_lshl_b32 s45, s29, 6")
                    e("s_lshl_b32 s46, s28, 2")
                    e("s_add_u32 s45, s45, s46")
                    e(f"s_add_u32 s45, s45, {mbi}")
                    e("s_lshr_b32 s46, s32, 1")
                    e("s_lshl_b32 s46, s46, 1")
                    e("s_add_u32 s45, s45, s46")
                    e("s_lshl_b32 s45, s45, 3")
                    e("s_and_b32 s46, s32, 1")
                    e("s_lshl_b32 s46, s46, 2")
                    e("s_add_u32 s45, s45, s46")
                    e(f"s_add_u32 s45, s45, {2*nbi + (g >> 1)}")
                    e("s_lshl_b32 s45, s45, 10")
                    e(f"v_lshl_add_u32 v14, v10, 4, s45")
                    e("v_lshl_add_u32 v14, v11, 3, v14")
                    e(f"buffer_store_dwordx2 v[12:13], v14, s[24:27], 0 offen offset:{512*(g&1)}")
                    e("s_nop 1")
    elif epi == "part":
        e("s_lshl_b32 s45, s28, 7")
        e("s_lshr_b32 s46, s32, 1")
        e("s_lshl_b32 s46, s46, 6")
        e("s_add_u32 s45, s45, s46")
        e(f"s_mul_i32 s47, s30, {2048}")
        e("s_add_u32 s45, s45, s47")
        e("v_add_u32 v14, s45, v10")
        e(f"s_mov_b32 s47, {N*4}")
        e("v_mul_lo_u32 v14, v14, s47")
        e("s_lshl_b32 s45, s29, 7")
        e("s_and_b32 s46, s32, 1")
        e("s_lshl_b32 s46, s46, 6")
        e("s_add_u32 s45, s45, s46")
        e("s_lshl_b32 s45, s45, 2")
        e("v_add_u32 v14, s45, v14")
        e("v_lshl_add_u32 v14, v11, 4, v14")
        for nbi in range(2):
            for mbi in range(2):
                for g in range(4):
                    a = 64 + (nbi * 2 + mbi) * 16 + 4 * g
                    off = mbi * 32 * N * 4 + (32 * nbi + 8 * g) * 4
                    if off < 4096:
                        e(f"buffer_store_dwordx4 v[{a}:{a+3}], v14, s[24:27], 0 offen offset:{off}")
                    else:
                        e(f"s_mov_b32 s47, {off}")
                        e(f"buffer_store_dwordx4 v[{a}:{a+3}], v14, s[24:27], s47 offen")
    elif epi == "geglu":
        KSO = N // 16
        for mbi in range(2):
            for r in range(16):
                gr = 64 + mbi * 16 + r
                ur = 64 + 32 + mbi * 16 + r
                e(f"v_mul_f32 v12, v{gr}, v{gr}")
                e("v_mov_b32 v13, 0x3d372713")
                e(f"v_fma_f32 v12, v12, v13, 1.0")
                e(f"v_mul_f32 v12, v12, v{gr}")
                e("v_mul_f32 v12, 0xc0135761, v12")
                e("v_exp_f32 v12, v12")
                e("s_nop 0")
                e("v_add_f32 v12, 1.0, v12")
                e("v_rcp_f32 v12, v12")
                e("s_nop 0")
                e(f"v_mul_f32 v12, v12, v{gr}")
                e(f"v_mul_f32 v{gr}, v12, v{ur}")
            for g in range(4):
                a = 64 + mbi * 16 + 4 * g
                e(f"v_cvt_pk_bf16_f32 v12, v{a}, v{a+1}")
                e(f"v_cvt_pk_bf16_f32 v13, v{a+2}, v{a+3}")
                e("s_lshl_b32 s45, s28, 2")
                e("s_lshr_b32 s46, s32, 1")
                e("s_lshl_b32 s46, s46, 1")
                e("s_add_u32 s45, s45, s46")
                e(f"s_add_u32 s45, s45, {mbi}")
                e(f"s_mul_i32 s45, s45, {KSO}")
                e("s_lshl_b32 s46, s29, 2")
                e("s_add_u32 s45, s45, s46")
                e("s_and_b32 s46, s32, 1")
                e("s_lshl_b32 s46, s46, 1")
                e("s_add_u32 s45, s45, s46")
                e(f"s_add_u32 s45, s45, {g >> 1}")
                e("s_lshl_b32 s45, s45, 10")
                e("v_lshl_add_u32 v14, v10, 4, s45")
                e("v_lshl_add_u32 v14, v11, 3, v14")
                e(f"buffer_store_dwordx2 v[12:13], v14, s[24:27], 0 offen offset:{512*(g&1)}")
                e("s_nop 1")
    e("s_waitcnt vmcnt(0)")
    lab(f"L_{name}_done")
    kernel_end(name, 128)
    launch(name, nwg, 256, 65536)


def k_attn():
    name = "k_attn_kernel"
    kernel_begin(name)
    e("s_cmp_ge_u32 s2, 256")
    e(f"s_cbranch_scc1 L_{name}_done")
    e(f"s_load_dwordx2 s[8:9], s[0:1], {A_WS}")
    e("s_waitcnt lgkmcnt(0)")
    srd_ws(12, 8, KP, 4194304)
    srd_ws(16, 8, VP, 4194304)
    srd_ws(20, 8, QF, 2048 * 4096 * 2)
    srd_ws(24, 8, OF, 2048 * 4096 * 2)
    e("s_and_b32 s28, s2, 7")
    e("s_lshr_b32 s29, s2, 3")
    e("s_and_b32 s29, s29, 3")
    e("s_lshl_b32 s30, s28, 2")
    e("s_add_u32 s29, s29, s30")
    e("s_lshr_b32 s30, s2, 5")
    e("v_lshrrev_b32 v1, 6, v0")
    e("v_and_b32 v2, 63, v0")
    e("s_nop 0")
    e("v_readfirstlane_b32 s32, v1")
    e("v_lshlrev_b32 v3, 4, v2")
    e("s_lshl_b32 s33, s29, 6")
    e("s_lshl_b32 s34, s30, 3")
    e("s_add_u32 s33, s33, s34")
    e("s_add_u32 s33, s33, s32")
    e("s_lshl_b32 s33, s33, 13")
    e("v_add_u32 v4, s33, v3")
    for ks in range(8):
        e(f"buffer_load_dwordx4 v[{32+4*ks}:{35+4*ks}], v4, s[20:23], 0 offen offset:{1024*ks%4096}" if ks < 4 else
          f"buffer_load_dwordx4 v[{32+4*ks}:{35+4*ks}], v4, s[20:23], 0 offen offset:{1024*(ks-4)}")
        if ks == 3:
            e("v_add_u32 v4, 4096, v4")
    e("s_lshl_b32 s34, s28, 19")
    e("s_lshl_b32 s35, s32, 11")
    e("s_add_u32 s34, s34, s35")
    e("v_add_u32 v5, s34, v3")

    def dma(soff):
        e("s_add_u32 m0, s40, s35")
        e("s_nop 0")
        e(f"buffer_load_dwordx4 v5, s[12:15], s{soff} offen lds")
        e(f"buffer_load_dwordx4 v5, s[12:15], s{soff} offen offset:1024 lds")
        e("s_add_u32 s41, s40, 16384")
        e("s_add_u32 m0, s41, s35")
        e("s_nop 0")
        e(f"buffer_load_dwordx4 v5, s[16:19], s{soff} offen lds")
        e(f"buffer_load_dwordx4 v5, s[16:19], s{soff} offen offset:1024 lds")

    for i in range(64):
        e(f"v_mov_b32 v{64+i}, 0")
    e("v_mov_b32 v6, 0xff800000")
    e("v_mov_b32 v7, 0")
    e("s_mov_b32 s44, 0x3e0553f5")
    e("s_mov_b32 s40, 0")
    e("s_mov_b32 s42, 0")
    dma(42)
    e("s_cmp_ge_u32 s32, 4")
    e(f"s_cbranch_scc0 L_{name}_prio")
    e("s_setprio 1")
    lab(f"L_{name}_prio")
    e("s_mov_b32 s43, 0")
    lab(f"L_{name}_loop")
    e("s_waitcnt vmcnt(0)")
    e("s_barrier")
    e("s_add_u32 s45, s43, 1")
    e("s_cmp_lt_u32 s45, 32")
    e(f"s_cbranch_scc0 L_{name}_nodma")
    e("s_xor_b32 s40, s40, 32768")
    e("s_add_u32 s42, s42, 16384")
    dma(42)
    e("s_xor_b32 s40, s40, 32768")
    lab(f"L_{name}_nodma")
    e("v_add_u32 v8, s40, v3")
    for kb in range(2):
        for ks in range(8):
            f = 176 + 4 * ks
            e(f"ds_read_b128 v[{f}:{f+3}], v8 offset:{(kb*8+ks)*1024}")
        for ks in range(8):
            f = 176 + 4 * ks
            e(f"s_waitcnt lgkmcnt({7-ks})")
            s = 128 + 16 * kb
            c = f"v[{s}:{s+15}]" if ks else "0"
            e(f"v_mfma_f32_32x32x16_bf16 v[{s}:{s+15}], v[{f}:{f+3}], v[{32+4*ks}:{35+4*ks}], {c}")
    e("s_nop 15")
    e("v_max_f32 v9, v128, v129")
    for r in range(130, 160, 2):
        e(f"v_max3_f32 v9, v9, v{r}, v{r+1}")
    e("v_mov_b32 v10, v9")
    e("s_nop 1")
    e("v_permlane32_swap_b32 v9, v10")
    e("v_max_f32 v9, v9, v10")
    e("v_max_f32 v9, v9, v6")
    e("v_sub_f32 v10, v9, v6")
    e("v_mul_f32 v10, s44, v10")
    e("v_mov_b32 v11, 0x41000000")
    e("v_cmp_gt_f32 vcc, v10, v11")
    e(f"s_cbranch_vccz L_{name}_norescale")
    e("v_sub_f32 v10, v6, v9")
    e("v_mul_f32 v10, s44, v10")
    e("v_exp_f32 v10, v10")
    e("v_mov_b32 v6, v9")
    e("v_mul_f32 v7, v7, v10")
    for i in range(64):
        e(f"v_mul_f32 v{64+i}, v{64+i}, v10")
    lab(f"L_{name}_norescale")
    e("v_mul_f32 v11, s44, v6")
    for r in range(32):
        e(f"v_fma_f32 v{128+r}, v{128+r}, s44, -v11")
        e(f"v_exp_f32 v{128+r}, v{128+r}")
    e("s_nop 0")
    for r in range(32):
        e(f"v_add_f32 v7, v7, v{128+r}")
    for r in range(16):
        e(f"v_cvt_pk_bf16_f32 v{160+r}, v{128+2*r}, v{129+2*r}")
    for jj in range(4):
        for db in range(4):
            f = 176 + 4 * db
            e(f"ds_read_b128 v[{f}:{f+3}], v8 offset:{16384 + (jj*4+db)*1024}")
        for db in range(4):
            f = 176 + 4 * db
            e(f"s_waitcnt lgkmcnt({3-db})")
            a = 64 + 16 * db
            e(f"v_mfma_f32_32x32x16_bf16 v[{a}:{a+15}], v[{f}:{f+3}], v[{160+4*jj}:{163+4*jj}], v[{a}:{a+15}]")
    e("s_xor_b32 s40, s40, 32768")
    e("s_add_u32 s43, s43, 1")
    e("s_cmp_lt_u32 s43, 32")
    e(f"s_cbranch_scc1 L_{name}_loop")
    e("s_nop 15")
    e("v_mov_b32 v10, v7")
    e("s_nop 1")
    e("v_permlane32_swap_b32 v7, v10")
    e("v_add_f32 v7, v7, v10")
    e("v_rcp_f32 v7, v7")
    e("s_nop 0")
    e("v_and_b32 v10, 31, v2")
    e("v_lshrrev_b32 v11, 5, v2")
    e("s_lshl_b32 s45, s30, 3")
    e("s_add_u32 s45, s45, s32")
    e("s_lshl_b32 s45, s45, 8")
    e("s_lshl_b32 s46, s29, 3")
    e("s_add_u32 s45, s45, s46")
    e("s_lshl_b32 s45, s45, 10")
    e("v_lshl_add_u32 v14, v10, 4, s45")
    e("v_lshl_add_u32 v14, v11, 3, v14")
    for db in range(4):
        for g in range(4):
            a = 64 + 16 * db + 4 * g
            for k in range(4):
                e(f"v_mul_f32 v{a+k}, v{a+k}, v7")
            e(f"v_cvt_pk_bf16_f32 v12, v{a}, v{a+1}")
            e(f"v_cvt_pk_bf16_f32 v13, v{a+2}, v{a+3}")
            off = (2 * db + (g >> 1)) * 1024 + 512 * (g & 1)
            if off < 4096:
                e(f"buffer_store_dwordx2 v[12:13], v14, s[24:27], 0 offen offset:{off}")
            else:
                e(f"s_mov_b32 s47, 4096")
                e(f"buffer_store_dwordx2 v[12:13], v14, s[24:27], s47 offen offset:{off-4096}")
            e("s_nop 1")
    e("s_waitcnt vmcnt(0)")
    lab(f"L_{name}_done")
    kernel_end(name, 208)
    launch(name, 256, 512, 65536)


def k_final():
    name = "k_final_kernel"
    kernel_begin(name)
    e("s_cmp_ge_u32 s2, 512")
    e(f"s_cbranch_scc1 L_{name}_done")
    e(f"s_load_dwordx2 s[4:5], s[0:1], {A_OUT}")
    e(f"s_load_dwordx2 s[8:9], s[0:1], {A_WS}")
    e("s_waitcnt lgkmcnt(0)")
    srd(12, 4, 2048 * 512 * 2)
    srd_ws(16, 8, MOD, 3072 * 4)
    srd_ws(24, 8, PART2, 4 * 2048 * 512 * 4)
    srd_ws(28, 8, X2, 2048 * 512 * 4)
    e("v_lshrrev_b32 v1, 6, v0")
    e("s_lshl_b32 s3, s2, 2")
    e("v_add_u32 v1, s3, v1")
    e("v_and_b32 v2, 63, v0")
    e("v_lshlrev_b32 v4, 5, v2")
    e(f"v_add_u32 v5, {5*512*4}, v4")
    e("buffer_load_dwordx4 v[28:31], v5, s[16:19], 0 offen")
    e("buffer_load_dwordx4 v[32:35], v5, s[16:19], 0 offen offset:16")
    e("v_lshlrev_b32 v6, 11, v1")
    e("v_add_u32 v6, v6, v4")
    e("buffer_load_dwordx4 v[40:43], v6, s[28:31], 0 offen")
    e("buffer_load_dwordx4 v[44:47], v6, s[28:31], 0 offen offset:16")
    for p in range(4):
        e(f"s_mov_b32 s33, {p * 2048 * 512 * 4}")
        e(f"buffer_load_dwordx4 v[{48+8*p}:{51+8*p}], v6, s[24:27], s33 offen")
        e(f"buffer_load_dwordx4 v[{52+8*p}:{55+8*p}], v6, s[24:27], s33 offen offset:16")
    e("s_waitcnt vmcnt(0)")
    for i in range(8):
        e(f"v_add_f32 v{48+i}, v{48+i}, v{56+i}")
        e(f"v_add_f32 v{64+i}, v{64+i}, v{72+i}")
        e(f"v_add_f32 v{48+i}, v{48+i}, v{64+i}")
        e(f"v_fmac_f32 v{40+i}, v{48+i}, v{28+i}")
    for i in range(4):
        e(f"v_cvt_pk_bf16_f32 v{8+i}, v{40+2*i}, v{41+2*i}")
    e("v_lshlrev_b32 v3, 10, v1")
    e("v_lshl_add_u32 v3, v2, 4, v3")
    e("buffer_store_dwordx4 v[8:11], v3, s[12:15], 0 offen")
    e("s_waitcnt vmcnt(0)")
    lab(f"L_{name}_done")
    kernel_end(name, 96)
    launch(name, 512, 256)


def main():
    parts = [("B_mod", 96), ("B_k_prepwq_kernel", 1024), ("B_k_prepk_kernel", 1024), ("B_k_prepv_kernel", 1024),
             ("B_k_prepwo_kernel", 1024), ("B_k_prepwg_kernel", 448), ("B_k_prepwu_kernel", 448), ("B_k_prepwd_kernel", 448)]
    kernel_begin("k_prep_kernel")
    for lb, n in parts:
        e(f"s_cmp_lt_u32 s2, {n}")
        e(f"s_cbranch_scc1 {lb}")
        e(f"s_sub_u32 s2, s2, {n}")
    e("s_endpgm")
    k_mod()
    k_prep_k()
    k_prep_v()
    k_prep_w("k_prepwq_kernel", A_WQ, 512, 4096, WQP)
    k_prep_w("k_prepwo_kernel", A_WO, 4096, 512, WOP)
    k_prep_w("k_prepwg_kernel", A_WG, 512, 1792, WGP)
    k_prep_w("k_prepwu_kernel", A_WU, 512, 1792, WUP)
    k_prep_w("k_prepwd_kernel", A_WD, 1792, 512, WDP)
    kernel_end("k_prep_kernel", 64)
    launch("k_prep_kernel", sum(n for _, n in parts), 256, 4096)
    k_ln("k_ln1_kernel", 1)
    k_gemm("k_qproj_kernel", 512, 4096, WQP, H1, "q", dst=QF)
    k_attn()
    k_gemm("k_oproj_kernel", 4096, 512, WOP, OF, "part", splitk=4, dst=PART)
    k_ln("k_ln2_kernel", 2)
    k_gemm("k_ffn1_kernel", 512, 1792, WGP, H2, "geglu", wsrc2=WUP, dst=HM)
    k_gemm("k_ffn2_kernel", 1792, 512, WDP, HM, "part", splitk=4, dst=PART2)
    k_final()
    hdr = ["; adaLN + GQA attention + GEGLU block, multi-kernel launch list (generated by gen/gen.py)"] + launches
    txt = "\n".join(hdr) + "\n.amdgcn_target \"amdgcn-amd-amdhsa--gfx950\"\n.text\n" + "\n".join(lines) + \
        "\n.section .rodata,\"a\"\n.p2align 6\n" + "\n.p2align 6\n".join(descs) + "\n"
    open(OUT, "w").write(txt)


main()
```
